```python
import torch

def _softmax(x, axis=-1):
    return torch.softmax(x, dim=axis)
def _gelu(x):
    return torch.nn.functional.gelu(x, approximate="tanh")
def _silu(x):
    return torch.nn.functional.silu(x)
def _sigmoid(x):
    return torch.sigmoid(x)
def _layernorm(x, axis=-1, eps=1e-5):
    m = x.mean(dim=axis, keepdim=True)
    v = x.var(dim=axis, keepdim=True, unbiased=False)
    return (x - m) / torch.sqrt(v + eps)
def _scatter_add(tgt, idx, src, axis=0):
    return tgt.clone().index_add_(axis, idx, src)
def _segment_sum(src, seg, n):
    out = torch.zeros((n,) + src.shape[1:], dtype=src.dtype)
    return out.index_add_(0, seg, src)
def _pad(x, pw):
    flat = tuple(v for pair in reversed(pw) for v in pair)
    return torch.nn.functional.pad(x, flat)

kernel_name = 'gated_mix__gqa_block_cached__geglu_ffn__decode'

def setup_inputs():

    _w = (lambda a: (lambda t: t.to(torch.bfloat16) if t.is_floating_point() else t)(torch.as_tensor(a)))
    def _A_setup():
        B, Sq, D = 2, 1, 576
        Hq, Hkv, Sk, Dh = 32, 16, 32768, 128
        assert Hq % Hkv == 0, (Hq, Hkv)
        return {
            "x": _w((lambda *s: torch.randn(*s, dtype=torch.bfloat16) * 0.05)(B, Sq, D)),
            "k_cache": _w((lambda *s: torch.randn(*s, dtype=torch.bfloat16) * 6.4)(B, Hkv, Sk, Dh)),
            "v_cache": _w((lambda *s: torch.randn(*s, dtype=torch.bfloat16) * 0.4)(B, Hkv, Sk, Dh)),
            "wq": _w((lambda *s: torch.randn(*s, dtype=torch.bfloat16) * 6.4)(D, Hq * Dh) * (D ** -0.5)),
            "wo": _w((lambda *s: torch.randn(*s, dtype=torch.bfloat16) * 0.4)(Hq * Dh, D) * ((Hq * Dh) ** -0.5)),
        }
    _A_in = _A_setup()

    def _B_setup():
        B, S, D, F = 2, 1, 576, 4608
        return {
            "x": _w((lambda *s: torch.randn(*s, dtype=torch.bfloat16) * 0.05)(B, S, D)),
            "w_gate": _w((lambda *s: torch.randn(*s, dtype=torch.bfloat16) * 0.05)(D, F)),
            "w_up": _w((lambda *s: torch.randn(*s, dtype=torch.bfloat16) * 0.05)(D, F)),
            "w_down": _w((lambda *s: torch.randn(*s, dtype=torch.bfloat16) * 0.05)(F, D)),
        }
    _B_in = _B_setup()

    return {
        "A_x": _A_in["x"],
        "A_k_cache": _A_in["k_cache"],
        "A_v_cache": _A_in["v_cache"],
        "A_wq": _A_in["wq"],
        "A_wo": _A_in["wo"],
        "B_x": _B_in["x"],
        "B_w_gate": _B_in["w_gate"],
        "B_w_up": _B_in["w_up"],
        "B_w_down": _B_in["w_down"],
        "gate_w": _w((lambda *s: torch.randn(*s, dtype=torch.bfloat16) * 0.05)(576) * 16.0),
    }

def reference(A_x, A_k_cache, A_v_cache, A_wq, A_wo, B_x, B_w_gate, B_w_up, B_w_down, gate_w):
    def _A_ref(x, k_cache, v_cache, wq, wo):
        B, Sq, D = x.shape
        Hq, Dh = 32, 128
        Hkv = k_cache.shape[1]
        rep = Hq // Hkv
        q = (lambda x, *d: x.permute(*d))((x @ wq).reshape(B, Sq, Hq, Dh), 0, 2, 1, 3)
        k = (lambda x, n, axis: torch.repeat_interleave(x, n, dim=axis))(k_cache, rep, axis=1)
        v = (lambda x, n, axis: torch.repeat_interleave(x, n, dim=axis))(v_cache, rep, axis=1)
        scores = torch.einsum("bhqd,bhkd->bhqk", q, k) * (Dh ** -0.5)
        p = _softmax(scores, axis=-1)
        o = torch.einsum("bhqk,bhkd->bhqd", p, v)
        return (lambda x, *d: x.permute(*d))(o, 0, 2, 1, 3).reshape(B, Sq, Hq * Dh) @ wo

    def _B_ref(x, w_gate, w_up, w_down):
        return (_gelu(x @ w_gate) * (x @ w_up)) @ w_down

    x = A_x
    g = _sigmoid((x * gate_w).sum(-1, keepdims=True))
    a = _A_ref(x, A_k_cache, A_v_cache, A_wq, A_wo)
    b = _B_ref(x, B_w_gate, B_w_up, B_w_down)
    return g * a + (1 - g) * b
```

```python
import struct, sys

NAME = "gated_mix__gqa_block_cached__geglu_ffn__decode_kernel"

def f32(x): return struct.unpack('<I', struct.pack('<f', x))[0]

class Asm:
    def __init__(s): s.o = []; s.lab = 0
    def __call__(s, txt):
        for line in txt.strip('\n').split('\n'):
            s.o.append('    ' + line.strip())
    def label(s, name): s.o.append(name + ':')
    def newlab(s, p='L'): s.lab += 1; return f'{p}_{s.lab}'
    def text(s): return '\n'.join(s.o) + '\n'

class VAlloc:
    def __init__(s, start=0): s.n = start; s.hi = start
    def __call__(s, cnt=1, align=1):
        s.n = (s.n + align - 1)//align*align
        r = s.n; s.n += cnt; s.hi = max(s.hi, s.n); return r

def vr(b, n=1): return f'v{b}' if n == 1 else f'v[{b}:{b+n-1}]'

NSLOT = 4
LOOK = 3
PRE_B1 = 3
NIT = 32
MIMIC = True

L_RING = 0
L_QP = 131072
L_QB = L_QP + 4096
L_OW = L_QB + 2048
L_ML = L_OW + 4096
L_F1R = L_ML + 64
L_HB = L_F1R + 8192
L_YW = L_HB + 1024
L_CNT = L_YW + 4096
LDS_BYTES = L_CNT + 64

WS_OP = 0
WS_YP = 256*2048
WS_FP = WS_YP + 256*1024
NF1 = 216

SENT = 0xFFFFFFFF
SCALE = 128 ** -0.5
LOG2E = 1.4426950408889634

a = Asm()

def srd(dst, plo, off_sgpr_lo, size, off_hi=None):
    if off_sgpr_lo is None:
        a(f's_mov_b32 s{dst}, s{plo}')
        a(f's_and_b32 s{dst+1}, s{plo+1}, 0xffff')
    else:
        a(f's_add_u32 s{dst}, s{plo}, {off_sgpr_lo}')
        a(f's_addc_u32 s{dst+1}, s{plo+1}, 0')
        a(f's_and_b32 s{dst+1}, s{dst+1}, 0xffff')
    a(f's_mov_b32 s{dst+2}, {size}')
    a(f's_mov_b32 s{dst+3}, 0x00020000')

def make_selectors(vlane, selLo, selHi, t0, t1):
    a(f'v_and_b32 v{t0}, 1, v{vlane}')
    a(f'v_cmp_eq_u32 vcc, 1, v{t0}')
    a(f'v_mov_b32 v{t0}, 0x0c0c0100')
    a(f'v_mov_b32 v{t1}, 0x01000c0c')
    a('s_nop 1')
    a(f'v_cndmask_b32 v{t0}, v{t0}, v{t1}, vcc')
    a(f'v_mov_b32 v{t1}, 0x0c0c0302')
    a(f'v_mov_b32 v{selHi}, 0x03020c0c')
    a(f'v_cndmask_b32 v{t1}, v{t1}, v{selHi}, vcc')
    a(f'v_bfe_u32 v{selHi+3}, v{vlane}, 1, 2')
    a(f'v_mov_b32 v{selLo+3}, 0x0c0c0c0c')
    for w in range(3):
        a(f'v_cmp_eq_u32 vcc, {w}, v{selHi+3}')
        a('s_nop 1')
        a(f'v_cndmask_b32 v{selLo+w}, v{selLo+3}, v{t0}, vcc')
        a(f'v_cndmask_b32 v{selHi+w}, v{selLo+3}, v{t1}, vcc')
    a(f'v_cmp_eq_u32 vcc, 3, v{selHi+3}')
    a('s_nop 1')
    a(f'v_cndmask_b32 v{selHi+3}, v{selLo+3}, v{t1}, vcc')
    a(f'v_cndmask_b32 v{selLo+3}, v{selLo+3}, v{t0}, vcc')

def aop(dst, src, sel):
    for w in range(4):
        a(f'v_perm_b32 v{dst+w}, v{src}, v{src}, v{sel+w}')

hdr = open('gated_mix__gqa_block_cached__geglu_ffn__decode.s.ref').read().split('\n')
top = []
for line in hdr:
    if line.startswith('; @launch'):
        top.append(f'; @launch grid=(256,1,1) block=(512,1,1) lds={LDS_BYTES}')
    elif line.startswith(';'):
        top.append(line)
    else:
        break
print_top = '\n'.join(top) + '\n'

a.o.append('.amdgcn_target "amdgcn-amd-amdhsa--gfx950"')
a.o.append('.text')
a.o.append(f'.globl {NAME}')
a.o.append('.p2align 8')
a.o.append(f'.type {NAME},@function')
a.label(NAME)

S_WAVE, S_HKV, S_B, S_SP, S_W = 34, 35, 36, 37, 38
a('s_cmp_ge_u32 s2, 256')
a('s_cbranch_scc1 L_end')
a('s_load_dwordx16 s[8:23], s[0:1], 0')
a('s_load_dwordx8 s[24:31], s[0:1], 64')
a('s_load_dwordx2 s[32:33], s[0:1], 96')
V_LANE = 1; V_G = 2; V_C = 3
a('v_lshrrev_b32 v4, 6, v0')
a(f'v_and_b32 v{V_LANE}, 63, v0')
a(f'v_readfirstlane_b32 s{S_WAVE}, v4')
a(f'v_lshrrev_b32 v{V_G}, 4, v{V_LANE}')
a(f'v_and_b32 v{V_C}, 15, v{V_LANE}')
a('s_and_b32 s3, s2, 7')
a('s_lshr_b32 s4, s2, 3')
a('s_lshl_b32 s3, s3, 1')
a('s_and_b32 s5, s4, 1')
a(f's_add_u32 s{S_HKV}, s3, s5')
a('s_lshr_b32 s5, s4, 1')
a(f's_and_b32 s{S_B}, s5, 1')
a(f's_lshr_b32 s{S_SP}, s4, 2')
a(f's_and_b32 s{S_W}, s{S_WAVE}, 3')
a(f's_cmp_ge_u32 s{S_WAVE}, 4')
a('s_cbranch_scc1 L_helper')

va = VAlloc(4)
vKoff = va(4); vVoff = va(1); vKrd = va(4)
selLo = va(4); selHi = va(4)
vM = va(1); vMc = va(1); vL = va(1)
t0 = va(1); t1 = va(1); t2 = va(1); t3 = va(1)
acc = va(4, 4)
vQ = va(16, 4)
vKf = va(32, 4)
vS = va(8, 4)
vPk = va(4, 2)
vA = va(16, 4)
vR = va(8, 4)
vV = va(32*NSLOT, 4)
print('streaming vgprs', va.n, file=sys.stderr)
stream_v = va.n

SK, SV = 40, 44
S_T0, S_T1, S_RING, S_IT, S_C = 48, 49, 50, 51, 52
S_MSAME = 54
for j in range(4):
    a(f'v_add_u32 v{t0}, {4*j}, v{V_G}')
    a(f'v_xor_b32 v{t0}, v{t0}, v{V_C}')
    a(f'v_lshlrev_b32 v{t0}, 4, v{t0}')
    a(f'v_lshl_add_u32 v{vKoff+j}, v{V_G}, 8, v{t0}')
a(f'v_lshlrev_b32 v{t0}, 4, v{V_C}')
a(f'v_lshl_add_u32 v{vVoff}, v{V_G}, 10, v{t0}')
a(f's_lshl_b32 s{S_RING}, s{S_W}, 15')
for m in range(4):
    a(f'v_add_u32 v{t0}, {4*m}, v{V_G}')
    a(f'v_xor_b32 v{t0}, v{t0}, v{V_C}')
    a(f'v_lshlrev_b32 v{t0}, 4, v{t0}')
    a(f'v_lshl_add_u32 v{t0}, v{V_C}, 8, v{t0}')
    a(f'v_add_u32 v{vKrd+m}, s{S_RING}, v{t0}')
a(f's_lshl_b32 s3, s{S_B}, 4')
a(f's_add_u32 s3, s3, s{S_HKV}')
a('s_lshl_b32 s3, s3, 3')
a(f's_add_u32 s3, s3, s{S_SP}')
a('s_lshl_b32 s3, s3, 20')
a('s_waitcnt lgkmcnt(0)')
srd(SK, 10, 's3', 1 << 20)
srd(SV, 12, 's3', 1 << 20)
a(f's_lshl_b32 s{S_T0}, s{S_W}, 13')
a(f's_add_u32 s{S_T1}, s{S_T0}, 4096')

def issue_tile(slot):
    for u in range(2):
        a(f's_add_u32 m0, s{S_RING}, {slot*8192 + u*4096}')
        a('s_nop 0')
        so = S_T0 if u == 0 else S_T1
        for j in range(4):
            a(f'buffer_load_dwordx4 v{vKoff+j}, s[{SK}:{SK+3}], s{so} offen offset:{j*1024} nt lds')
    for u in range(2):
        so = S_T0 if u == 0 else S_T1
        for r in range(4):
            b_ = vV + slot*32 + (u*4 + r)*4
            a(f'buffer_load_dwordx4 {vr(b_,4)}, v{vVoff}, s[{SV}:{SV+3}], s{so} offen offset:{r*256} nt')
    a(f's_add_u32 s{S_T0}, s{S_T0}, 32768')
    a(f's_add_u32 s{S_T1}, s{S_T1}, 32768')

for t in range(PRE_B1):
    issue_tile(t)
make_selectors(V_LANE, selLo, selHi, t0, t1)
a(f'v_bfe_u32 v{t0}, v{V_LANE}, 3, 1')
a(f'v_lshrrev_b32 v{t1}, 5, v{V_LANE}')
a(f'v_cmp_eq_u32 s[{S_MSAME}:{S_MSAME+1}], v{t0}, v{t1}')
a(f'v_mov_b32 v{vM}, 0xff800000')
a(f'v_mov_b32 v{vMc}, 0xff800000')
a(f'v_mov_b32 v{vL}, 0')
for r in range(4): a(f'v_mov_b32 v{acc+r}, 0')
if MIMIC:
    a(f's_mov_b32 s{S_C}, {f32(LOG2E):#x}')
    a(f's_mov_b32 s{S_C+1}, {f32(SCALE):#x}')
else:
    a(f's_mov_b32 s{S_C}, {f32(SCALE*LOG2E):#x}')
a('s_barrier')
for t in range(PRE_B1, LOOK):
    issue_tile(t)
a(f'v_lshlrev_b32 v{t0}, 4, v{V_LANE}')
a(f'v_add_u32 v{t0}, {L_QP}, v{t0}')
for wv in range(4):
    a(f'ds_read_b128 {vr(vKf+4*wv,4)}, v{t0} offset:{wv*1024}')
a('s_waitcnt lgkmcnt(0)')
for r in range(4):
    a(f'v_add_f32 v{vKf+r}, v{vKf+r}, v{vKf+4+r}')
    a(f'v_add_f32 v{vKf+8+r}, v{vKf+8+r}, v{vKf+12+r}')
for r in range(4):
    a(f'v_add_f32 v{vKf+r}, v{vKf+r}, v{vKf+8+r}')
a(f'v_cvt_pk_bf16_f32 v{vPk}, v{vKf}, v{vKf+1}')
a(f'v_cvt_pk_bf16_f32 v{vPk+1}, v{vKf+2}, v{vKf+3}')
a(f's_lshl_b32 s3, s{S_W}, 9')
a(f's_add_u32 s3, s3, {L_QB}')
a(f'v_lshl_add_u32 v{t0}, v{V_LANE}, 3, s3')
a(f'ds_write_b64 v{t0}, {vr(vPk,2)}')
a(f'v_bfe_u32 v{t1}, v{V_LANE}, 3, 1')
a(f'v_lshlrev_b32 v{t1}, 8, v{t1}')
a(f'v_lshl_add_u32 v{t1}, v{V_G}, 4, v{t1}')
a(f'v_add_u32 v{t1}, s3, v{t1}')
a('s_waitcnt lgkmcnt(0)')
for m in range(4):
    a(f'ds_read_b128 {vr(vQ+4*m,4)}, v{t1} offset:{m*64}')
a('s_waitcnt lgkmcnt(0)')
a(f's_mov_b32 s{S_IT}, {NIT//NSLOT}')
a.label('L_sloop')
for slot in range(NSLOT):
    a(f's_waitcnt vmcnt({8 + (LOOK-1)*16})')
    for u in range(2):
        for m in range(4):
            a(f'ds_read_b128 {vr(vKf+(u*4+m)*4,4)}, v{vKrd+m} offset:{slot*8192+u*4096}')
    issue_tile((slot+LOOK) % NSLOT)
    for u in range(2):
        for m in range(4):
            a(f's_waitcnt lgkmcnt({7-(u*4+m)})')
            c = '0' if m == 0 else vr(vS+4*u,4)
            a(f'v_mfma_f32_16x16x32_bf16 {vr(vS+4*u,4)}, {vr(vKf+(u*4+m)*4,4)}, {vr(vQ+4*m,4)}, {c}')
    a('s_nop 7')
    a('s_nop 1')
    if MIMIC:
        for j in range(4):
            a(f'v_cvt_pk_bf16_f32 v{vPk+j}, v{vS+2*j}, v{vS+2*j+1}')
        for j in range(4):
            a(f'v_lshlrev_b32 v{vS+2*j}, 16, v{vPk+j}')
            a(f'v_and_b32 v{vS+2*j+1}, 0xffff0000, v{vPk+j}')
        for i in range(8):
            a(f'v_mul_f32 v{vS+i}, s{S_C+1}, v{vS+i}')
        for j in range(4):
            a(f'v_cvt_pk_bf16_f32 v{vPk+j}, v{vS+2*j}, v{vS+2*j+1}')
        for j in range(4):
            a(f'v_lshlrev_b32 v{vS+2*j}, 16, v{vPk+j}')
            a(f'v_and_b32 v{vS+2*j+1}, 0xffff0000, v{vPk+j}')
    a(f'v_max3_f32 v{t0}, v{vS}, v{vS+1}, v{vS+2}')
    a(f'v_max3_f32 v{t1}, v{vS+3}, v{vS+4}, v{vS+5}')
    a(f'v_max3_f32 v{t0}, v{t0}, v{vS+6}, v{vS+7}')
    a(f'v_max_f32 v{t0}, v{t0}, v{t1}')
    a(f'v_cmp_gt_f32 vcc, v{t0}, v{vM}')
    rare = f'L_rare_{slot}'; back = f'L_back_{slot}'
    a(f's_cbranch_vccnz {rare}')
    a.label(back)
    for i in range(8):
        a(f'v_fma_f32 v{vS+i}, v{vS+i}, s{S_C}, -v{vMc}')
    for i in range(8):
        a(f'v_exp_f32 v{vS+i}, v{vS+i}')
    a('s_nop 0')
    for j in range(4):
        a(f'v_cvt_pk_bf16_f32 v{vPk+j}, v{vS+2*j}, v{vS+2*j+1}')
    a(f'v_add_f32 v{t0}, v{vS}, v{vS+1}')
    a(f'v_add_f32 v{t1}, v{vS+2}, v{vS+3}')
    a(f'v_add_f32 v{t2}, v{vS+4}, v{vS+5}')
    a(f'v_add_f32 v{t3}, v{vS+6}, v{vS+7}')
    a(f'v_add_f32 v{t0}, v{t0}, v{t1}')
    a(f'v_add_f32 v{t2}, v{t2}, v{t3}')
    a(f'v_add_f32 v{t0}, v{t0}, v{t2}')
    a(f'v_add_f32 v{vL}, v{vL}, v{t0}')
    for i in range(4):
        aop(vA+4*i, vPk+i//2, selLo if i % 2 == 0 else selHi)
    a(f's_waitcnt vmcnt({LOOK*16})')
    for i in range(8):
        b_ = vV + slot*32 + i*4
        a(f'v_mfma_f32_16x16x32_bf16 {vr(acc,4)}, {vr(vA+4*(i%4),4)}, {vr(b_,4)}, {vr(acc,4)}')
        if i < 4:
            aop(vA+4*i, vPk+(i+4)//2, selLo if i % 2 == 0 else selHi)
            if i == 3: a('s_nop 1')
a(f's_sub_u32 s{S_IT}, s{S_IT}, 1')
a(f's_cmp_lg_u32 s{S_IT}, 0')
a('s_cbranch_scc1 L_sloop')
a(f'v_mov_b32 v{t0}, v{vL}')
a('s_nop 1')
a(f'v_permlane16_swap_b32 v{vL}, v{t0}')
a('s_nop 1')
a(f'v_add_f32 v{vL}, v{vL}, v{t0}')
a(f'v_mov_b32 v{t0}, v{vL}')
a('s_nop 1')
a(f'v_permlane32_swap_b32 v{vL}, v{t0}')
a('s_nop 1')
a(f'v_add_f32 v{vPk+1}, v{vL}, v{t0}')
a(f'v_mov_b32 v{vPk}, v{vM}')
a(f'v_lshrrev_b32 v{t0}, 1, v{V_G}')
a(f'v_lshlrev_b32 v{t0}, 9, v{t0}')
a(f'v_lshl_add_u32 v{t0}, v{V_C}, 5, v{t0}')
a(f'v_and_b32 v{t1}, 1, v{V_G}')
a(f'v_lshl_add_u32 v{t0}, v{t1}, 4, v{t0}')
a(f's_lshl_b32 s3, s{S_W}, 10')
a(f's_add_u32 s3, s3, {L_OW}')
a(f'v_add_u32 v{t0}, s3, v{t0}')
a('s_nop 7')
a(f'ds_write_b128 v{t0}, {vr(acc,4)}')
a(f'v_bfe_u32 v{t1}, v{V_LANE}, 3, 1')
a(f'v_lshlrev_b32 v{t1}, 3, v{t1}')
a(f's_lshl_b32 s3, s{S_W}, 4')
a(f's_add_u32 s3, s3, {L_ML}')
a(f'v_add_u32 v{t1}, s3, v{t1}')
a(f'ds_write_b64 v{t1}, {vr(vPk,2)}')
a('s_waitcnt lgkmcnt(0)')
a('s_barrier')
a('s_endpgm')
for slot in range(NSLOT):
    a.label(f'L_rare_{slot}')
    a(f'v_max_f32 v{t0}, v{t0}, v{vM}')
    a(f'v_mov_b32 v{t1}, v{t0}')
    a('s_nop 1')
    a(f'v_permlane16_swap_b32 v{t0}, v{t1}')
    a('s_nop 1')
    a(f'v_max_f32 v{t0}, v{t0}, v{t1}')
    a(f'v_mov_b32 v{t1}, v{t0}')
    a('s_nop 1')
    a(f'v_permlane32_swap_b32 v{t0}, v{t1}')
    a('s_nop 1')
    a(f'v_max_f32 v{t0}, v{t0}, v{t1}')
    a(f'v_sub_f32 v{t1}, v{vM}, v{t0}')
    a(f'v_mul_f32 v{t1}, s{S_C}, v{t1}')
    a(f'v_exp_f32 v{t1}, v{t1}')
    a(f'v_mov_b32 v{vM}, v{t0}')
    a(f'v_mul_f32 v{vMc}, s{S_C}, v{t0}')
    a(f'v_mul_f32 v{vL}, v{vL}, v{t1}')
    a('s_nop 1')
    a(f'v_mov_b32_dpp v{t2}, v{t1} row_ror:8 row_mask:0xf bank_mask:0xf')
    a('s_nop 1')
    a(f'v_cndmask_b32 v{t2}, v{t2}, v{t1}, s[{S_MSAME}:{S_MSAME+1}]')
    for r in range(4):
        a(f'v_mul_f32 v{acc+r}, v{acc+r}, v{t2}')
    a('s_nop 1')
    a(f's_branch L_back_{slot}')

a.label('L_helper')
va = VAlloc(4)
selLo = va(4); selHi = va(4)
t0 = va(1); t1 = va(1); t2 = va(1); t3 = va(1); t4 = va(1); t5 = va(1)
vOff = va(1); vOff2 = va(1)
accQ = va(8, 4)
vA = va(8, 4)
vX = va(20, 4)
QD = 44
vW = va(4*QD, 4)
print('helper vgprs', va.n, file=sys.stderr)
helper_v = va.n
SA, SB_, SC_, SD = 40, 44, 48, 52
S_O = 56; S_T = 57; S_G = 58; S_OMG = 59; S_C = 60
a(f'v_mov_b32 v{t0}, {L_CNT}')
a(f'v_mov_b32 v{t1}, 0')
a(f'v_lshl_add_u32 v{t0}, v{V_C}, 2, v{t0}')
a(f'ds_write_b32 v{t0}, v{t1}')
a(f's_mul_i32 s3, s{S_W}, 288')
a(f'v_mul_u32_u24 v{t0}, 72, v{V_G}')
a(f'v_add_u32 v{vOff2}, s3, v{t0}')
a(f's_mul_i32 s3, s{S_W}, {144*8192}')
a(f'v_mul_u32_u24 v{t0}, {36*8192}, v{V_G}')
a(f'v_lshl_add_u32 v{t0}, v{V_C}, 4, v{t0}')
a(f'v_add_u32 v{vOff}, s3, v{t0}')
a(f's_mul_i32 s3, s{S_B}, 1152')
a(f's_lshl_b32 s4, s{S_HKV}, 9')
a(f's_sub_u32 s5, {576*8192}, s4')
a('s_waitcnt lgkmcnt(0)')
srd(SA, 8, 's3', 1152)
srd(SB_, 14, 's4', 's5')
for i in range(4):
    a(f'buffer_load_dwordx4 {vr(vX+4*i,4)}, v{vOff2}, s[{SA}:{SA+3}], 0 offen offset:{16*i}')
a(f'buffer_load_dwordx2 {vr(vX+16,2)}, v{vOff2}, s[{SA}:{SA+3}], 0 offen offset:64')
a(f's_mov_b32 s{S_O}, 0')
NQ = 72
def qload(i):
    t, cb = i//2, i % 2
    a(f'buffer_load_dwordx4 {vr(vW+4*(i%QD),4)}, v{vOff}, s[{SB_}:{SB_+3}], s{S_O} offen offset:{cb*256}')
    if cb == 1: a(f's_add_u32 s{S_O}, s{S_O}, 8192')
for i in range(QD): qload(i)
make_selectors(V_LANE, selLo, selHi, t0, t1)
issued = QD
for i in range(NQ):
    t, cb = i//2, i % 2
    a(f's_waitcnt vmcnt({issued-1-i})')
    if cb == 0:
        aop(vA+4*(t%2), vX+t//2, selLo if t % 2 == 0 else selHi)
        a('s_nop 1')
    c = '0' if t == 0 else vr(accQ+4*cb,4)
    a(f'v_mfma_f32_16x16x32_bf16 {vr(accQ+4*cb,4)}, {vr(vA+4*(t%2),4)}, {vr(vW+4*(i%QD),4)}, {c}')
    if issued < NQ:
        qload(issued); issued += 1
a(f'v_and_b32 v{t1}, 1, v{V_G}')
a(f'v_lshlrev_b32 v{t0}, 5, v{V_C}')
a(f'v_lshl_add_u32 v{t0}, v{t1}, 4, v{t0}')
a(f's_lshl_b32 s3, s{S_W}, 10')
a(f's_add_u32 s3, s3, {L_QP}')
a(f'v_add_u32 v{t2}, s3, v{t0}')
a('s_nop 7')
a(f'ds_write_b128 v{t2}, {vr(accQ,4)}')
a(f'ds_write_b128 v{t2}, {vr(accQ+4,4)} offset:512')
a('s_waitcnt lgkmcnt(0)')
a('s_barrier')

vT = va(1)
a(f's_lshl_b32 s3, s{S_W}, 6')
a(f'v_add_u32 v{vT}, s3, v{V_LANE}')
srd(SD, 32, None, 4 << 20)
S_REC = 61; S_YREC = 62
a(f's_lshl_b32 s3, s{S_B}, 4')
a(f's_add_u32 s3, s3, s{S_HKV}')
a('s_lshl_b32 s3, s3, 3')
a(f's_add_u32 s3, s3, s{S_SP}')
a(f's_lshl_b32 s{S_REC}, s3, 11')
a(f's_lshl_b32 s3, s{S_B}, 3')
a(f's_add_u32 s3, s3, s{S_SP}')
a('s_lshl_b32 s3, s3, 4')
a(f's_add_u32 s3, s3, s{S_HKV}')
a('s_lshl_b32 s3, s3, 10')
a(f's_add_u32 s{S_YREC}, s3, {WS_YP}')
a(f'v_mov_b32 v{t1}, -1')
a(f'v_lshlrev_b32 v{t2}, 2, v{vT}')
a(f'buffer_store_dword v{t1}, v{t2}, s[{SD}:{SD+3}], s{S_REC} offen sc1')
a(f'v_cmp_gt_u32 vcc, 144, v{vT}')
a('s_and_saveexec_b64 s[4:5], vcc')
a('s_cbranch_execz L_i1')
a(f'buffer_store_dword v{t1}, v{t2}, s[{SD}:{SD+3}], s{S_YREC} offen sc1')
a(f'v_cmp_gt_u32 vcc, 4, v{vT}')
a('s_and_b64 exec, exec, vcc')
a('s_cbranch_execz L_i1')
a(f'buffer_store_dword v{t1}, v{t2}, s[{SD}:{SD+3}], s{S_REC} offen offset:1024 sc1')
a.label('L_i1')
a('s_mov_b64 exec, s[4:5]')

def softbar(idx):
    l = a.newlab('L_sb')
    a('s_waitcnt lgkmcnt(0)')
    a(f'v_mov_b32 v{t4}, {L_CNT + 4*idx}')
    a(f'v_mov_b32 v{t5}, 1')
    a('s_mov_b64 s[4:5], exec')
    a('s_mov_b64 exec, 1')
    a(f'ds_add_u32 v{t4}, v{t5}')
    a('s_mov_b64 exec, s[4:5]')
    a.label(l)
    a(f'ds_read_b32 v{t5}, v{t4}')
    a('s_waitcnt lgkmcnt(0)')
    a(f'v_readfirstlane_b32 s4, v{t5}')
    a('s_cmp_lt_u32 s4, 4')
    a(f's_cbranch_scc1 {l}')

a(f's_cmp_ge_u32 s2, {NF1}')
a('s_cbranch_scc1 L_nof1')
S_KS, S_CB = 63, 64
a(f's_mul_i32 s3, s2, 1821')
a(f's_lshr_b32 s{S_KS}, s3, 16')
a(f's_mul_i32 s3, s{S_KS}, 36')
a(f's_sub_u32 s{S_CB}, s2, s3')
a(f's_mul_i32 s3, s{S_KS}, 96')
a(f's_mul_i32 s4, s{S_W}, 24')
a('s_add_u32 s3, s3, s4')
a(f'v_mul_u32_u24 v{t1}, 6, v{V_G}')
a(f'v_add_u32 v{t1}, s3, v{t1}')
a(f'v_mul_u32_u24 v{vOff}, 9216, v{t1}')
a(f'v_lshl_add_u32 v{vOff}, v{V_C}, 4, v{vOff}')
a(f'v_bfe_u32 v{t2}, v{V_LANE}, 3, 1')
a(f'v_mul_u32_u24 v{t2}, 1152, v{t2}')
a(f'v_lshl_add_u32 v{vOff2}, v{t1}, 1, v{t2}')
a(f's_lshl_b32 s3, s{S_CB}, 8')
a(f's_sub_u32 s4, {576*9216}, s3')
srd(SA, 8, None, 2304)
srd(SB_, 20, 's3', 's4')
srd(SC_, 22, 's3', 's4')
a(f'buffer_load_dwordx3 {vr(vX,3)}, v{vOff2}, s[{SA}:{SA+3}], 0 offen')
a(f's_mov_b32 s{S_O}, 0')
for t in range(6):
    a(f'buffer_load_dwordx4 {vr(vW+8*t,4)}, v{vOff}, s[{SB_}:{SB_+3}], s{S_O} offen nt')
    a(f'buffer_load_dwordx4 {vr(vW+8*t+4,4)}, v{vOff}, s[{SC_}:{SC_+3}], s{S_O} offen nt')
    a(f's_add_u32 s{S_O}, s{S_O}, 9216')
for t in range(6):
    a(f's_waitcnt vmcnt({10-2*t})')
    aop(vA+4*(t%2), vX+t//2, selLo if t % 2 == 0 else selHi)
    a('s_nop 1')
    for mt in range(2):
        c = '0' if t == 0 else vr(accQ+4*mt,4)
        a(f'v_mfma_f32_16x16x32_bf16 {vr(accQ+4*mt,4)}, {vr(vA+4*(t%2),4)}, {vr(vW+8*t+4*mt,4)}, {c}')
a(f'v_lshrrev_b32 v{t1}, 1, v{V_G}')
a(f'v_lshl_add_u32 v{t1}, v{t1}, 9, v{t0}')
a(f's_lshl_b32 s3, s{S_W}, 11')
a(f's_add_u32 s3, s3, {L_F1R}')
a(f'v_add_u32 v{t1}, s3, v{t1}')
a('s_nop 7')
a(f'ds_write_b128 v{t1}, {vr(accQ,4)}')
a(f'ds_write_b128 v{t1}, {vr(accQ+4,4)} offset:1024')
softbar(0)
a(f'v_lshlrev_b32 v{t1}, 3, v{vT}')
a(f'v_add_u32 v{t1}, {L_F1R}, v{t1}')
for wv in range(4):
    a(f'ds_read_b64 {vr(vX+2*wv,2)}, v{t1} offset:{wv*2048}')
a('s_waitcnt lgkmcnt(0)')
for r in range(2):
    a(f'v_add_f32 v{vX+r}, v{vX+r}, v{vX+2+r}')
    a(f'v_add_f32 v{vX+4+r}, v{vX+4+r}, v{vX+6+r}')
for r in range(2):
    a(f'v_add_f32 v{vX+r}, v{vX+r}, v{vX+4+r}')
a(f's_lshl_b32 s3, s{S_KS}, 2')
a(f's_add_u32 s3, s3, s{S_W}')
a(f's_mul_i32 s3, s3, {4608*4}')
a(f's_lshl_b32 s4, s{S_CB}, 9')
a('s_add_u32 s3, s3, s4')
a(f's_add_u32 s3, s3, {WS_FP}')
a(f'v_lshlrev_b32 v{t1}, 3, v{V_LANE}')
a(f'buffer_store_dwordx2 {vr(vX,2)}, v{t1}, s[{SD}:{SD+3}], s3 offen sc1')
a.label('L_nof1')
a('s_waitcnt vmcnt(0)')
softbar(1)
a(f's_cmp_lg_u32 s{S_W}, 0')
a('s_cbranch_scc1 L_nosig')
a(f'v_mov_b32 v{t1}, 0')
a(f'v_mov_b32 v{t2}, 1')
a('s_mov_b64 s[4:5], exec')
a('s_mov_b64 exec, 1')
a(f'global_atomic_add v{t1}, v{t2}, s[30:31]')
a('s_mov_b64 exec, s[4:5]')
a.label('L_nosig')

vWD = vW; vWO = vW + 72; vP = vW + 72 + 64
assert vP + 40 <= vW + 4*QD
accA = accQ; accF = accQ + 4
a(f'v_cmp_gt_u32 vcc, 9, v{V_C}')
a(f'v_lshlrev_b32 v{t1}, 4, v{V_C}')
a(f'v_mov_b32 v{t2}, 0x40000000')
a('s_nop 0')
a(f'v_cndmask_b32 v{t3}, v{t2}, v{t1}, vcc')
a(f's_mul_i32 s3, s{S_W}, {72*1152}')
a(f'v_mul_u32_u24 v{t1}, {18*1152}, v{V_G}')
a(f'v_add3_u32 v{vOff}, v{t1}, v{t3}, s3')
a(f's_mul_i32 s3, s{S_W}, {64*1152}')
a(f'v_mul_u32_u24 v{t1}, {16*1152}, v{V_G}')
a(f'v_add3_u32 v{vOff2}, v{t1}, v{t3}, s3')
a(f's_mul_i32 s3, s{S_HKV}, {288*1152}')
a(f's_mul_i32 s4, s{S_SP}, 144')
a('s_add_u32 s3, s3, s4')
a(f's_sub_u32 s5, {4608*1152}, s3')
srd(SA, 24, 's3', 's5')
a(f's_mul_i32 s3, s{S_HKV}, {256*1152}')
a('s_add_u32 s3, s3, s4')
a(f's_sub_u32 s5, {4096*1152}, s3')
srd(SB_, 16, 's3', 's5')
a(f's_mov_b32 s{S_O}, 0')
for t in range(18):
    a(f'buffer_load_dwordx4 {vr(vWD+4*t,4)}, v{vOff}, s[{SA}:{SA+3}], s{S_O} offen')
    if t < 16:
        a(f'buffer_load_dwordx4 {vr(vWO+4*t,4)}, v{vOff2}, s[{SB_}:{SB_+3}], s{S_O} offen')
    a(f's_add_u32 s{S_O}, s{S_O}, 1152')
a(f's_or_b32 s3, s{S_HKV}, s{S_W}')
a('s_cmp_lg_u32 s3, 0')
a('s_cbranch_scc1 L_nog')
a(f'v_cmp_gt_u32 vcc, 36, v{V_LANE}')
a(f'v_lshlrev_b32 v{t1}, 4, v{V_LANE}')
a(f'v_mov_b32 v{t2}, 0x40000000')
a('s_nop 0')
a(f'v_cndmask_b32 v{t1}, v{t2}, v{t1}, vcc')
a(f's_mul_i32 s3, s{S_B}, 1152')
srd(SC_, 8, 's3', 1152)
a(f'buffer_load_dwordx4 {vr(vP,4)}, v{t1}, s[{SC_}:{SC_+3}], 0 offen')
a(f'buffer_load_dwordx4 {vr(vP+4,4)}, v{t1}, s[{SC_}:{SC_+3}], 0 offen offset:576')
srd(SC_, 26, None, 1152)
a(f'buffer_load_dwordx4 {vr(vP+8,4)}, v{t1}, s[{SC_}:{SC_+3}], 0 offen')
a(f'buffer_load_dwordx4 {vr(vP+12,4)}, v{t1}, s[{SC_}:{SC_+3}], 0 offen offset:576')
a('s_waitcnt vmcnt(0)')
a(f'v_mov_b32 v{t4}, 0')
for i in range(8):
    a(f'v_lshlrev_b32 v{t1}, 16, v{vP+i}')
    a(f'v_lshlrev_b32 v{t2}, 16, v{vP+8+i}')
    a(f'v_and_b32 v{t3}, 0xffff0000, v{vP+i}')
    a(f'v_and_b32 v{t5}, 0xffff0000, v{vP+8+i}')
    a(f'v_mul_f32 v{t1}, v{t1}, v{t2}')
    a(f'v_mul_f32 v{t3}, v{t3}, v{t5}')
    a(f'v_cvt_pk_bf16_f32 v{t1}, v{t1}, v{t3}')
    a(f'v_lshlrev_b32 v{t2}, 16, v{t1}')
    a(f'v_and_b32 v{t3}, 0xffff0000, v{t1}')
    a(f'v_add_f32 v{t4}, v{t4}, v{t2}')
    a(f'v_add_f32 v{t4}, v{t4}, v{t3}')
def xreduce(v, tmp, op):
    for ror in (8, 4, 2, 1):
        a('s_nop 1')
        a(f'v_mov_b32_dpp v{tmp}, v{v} row_ror:{ror} row_mask:0xf bank_mask:0xf')
        a(f'{op} v{v}, v{v}, v{tmp}')
    for sw in ('v_permlane16_swap_b32', 'v_permlane32_swap_b32'):
        a(f'v_mov_b32 v{tmp}, v{v}')
        a('s_nop 1')
        a(f'{sw} v{v}, v{tmp}')
        a('s_nop 1')
        a(f'{op} v{v}, v{v}, v{tmp}')
xreduce(t4, t1, 'v_add_f32')
a(f'v_cvt_pk_bf16_f32 v{t1}, v{t4}, v{t4}')
a(f'v_lshlrev_b32 v{t1}, 16, v{t1}')
a(f'v_mul_f32 v{t1}, {f32(-LOG2E):#x}, v{t1}')
a(f'v_exp_f32 v{t1}, v{t1}')
a('s_nop 0')
a(f'v_add_f32 v{t1}, 1.0, v{t1}')
a(f'v_rcp_f32 v{t1}, v{t1}')
a('s_nop 0')
a(f'v_cvt_pk_bf16_f32 v{t1}, v{t1}, v{t1}')
a(f'v_lshlrev_b32 v{t1}, 16, v{t1}')
a(f'v_sub_f32 v{t2}, 1.0, v{t1}')
a(f'v_cvt_pk_bf16_f32 v{t2}, v{t2}, v{t2}')
a(f'v_lshlrev_b32 v{t2}, 16, v{t2}')
a('s_nop 0')
a(f'v_readfirstlane_b32 s{S_G}, v{t1}')
a(f'v_readfirstlane_b32 s{S_OMG}, v{t2}')
a.label('L_nog')

a.label('L_cwait')
a(f'v_mov_b32 v{t1}, 0')
a(f'global_load_dword v{t2}, v{t1}, s[30:31] sc1')
a('s_waitcnt vmcnt(0)')
a(f'v_readfirstlane_b32 s3, v{t2}')
a('s_cmp_ge_u32 s3, 256')
a('s_cbranch_scc1 L_cdone')
a('s_sleep 8')
a('s_branch L_cwait')
a.label('L_cdone')

a(f'v_cmp_gt_u32 vcc, 36, v{V_LANE}')
a(f'v_lshlrev_b32 v{t1}, 3, v{V_LANE}')
a(f'v_mov_b32 v{t2}, 0x40000000')
a('s_nop 0')
a(f'v_cndmask_b32 v{t1}, v{t2}, v{t1}, vcc')
a(f's_mul_i32 s3, s{S_HKV}, {288*4}')
a(f's_mul_i32 s4, s{S_W}, {72*4}')
a('s_add_u32 s3, s3, s4')
a(f's_mul_i32 s4, s{S_B}, {4608*4}')
a('s_add_u32 s3, s3, s4')
a(f's_add_u32 s3, s3, {WS_FP}')
for ks in range(6):
    for mt in range(2):
        a(f'buffer_load_dwordx2 {vr(vP+2*(ks*2+mt),2)}, v{t1}, s[{SD}:{SD+3}], s3 offen sc1')
        a(f's_add_u32 s3, s3, {2*4608*4}')
a('s_waitcnt vmcnt(0)')
for mt in range(2):
    for r in range(2):
        for ks in range(1, 6):
            a(f'v_add_f32 v{vP+2*mt+r}, v{vP+2*mt+r}, v{vP+2*(ks*2+mt)+r}')
a(f'v_cvt_pk_bf16_f32 v{t1}, v{vP}, v{vP+1}')
a(f'v_cvt_pk_bf16_f32 v{t2}, v{vP+2}, v{vP+3}')
a(f'v_lshlrev_b32 v{vP}, 16, v{t1}')
a(f'v_and_b32 v{vP+1}, 0xffff0000, v{t1}')
a(f'v_lshlrev_b32 v{vP+2}, 16, v{t2}')
a(f'v_and_b32 v{vP+3}, 0xffff0000, v{t2}')
K0 = 0.7978845608028654; K1 = 0.044715
a(f's_mov_b32 s3, {f32(K1):#x}')
a(f's_mov_b32 s4, {f32(-2*LOG2E*K0):#x}')
for r in range(2):
    a(f'v_mul_f32 v{t1}, v{vP+r}, v{vP+r}')
    a(f'v_fma_f32 v{t1}, v{t1}, s3, 1.0')
    a(f'v_mul_f32 v{t1}, v{t1}, v{vP+r}')
    a(f'v_mul_f32 v{t1}, s4, v{t1}')
    a(f'v_exp_f32 v{t1}, v{t1}')
    a('s_nop 0')
    a(f'v_add_f32 v{t1}, 1.0, v{t1}')
    a(f'v_rcp_f32 v{t1}, v{t1}')
    a('s_nop 0')
    a(f'v_mul_f32 v{vP+r}, v{vP+r}, v{t1}')
a(f'v_cvt_pk_bf16_f32 v{t1}, v{vP}, v{vP+1}')
a(f'v_lshlrev_b32 v{vP}, 16, v{t1}')
a(f'v_and_b32 v{vP+1}, 0xffff0000, v{t1}')
a(f'v_mul_f32 v{vP}, v{vP}, v{vP+2}')
a(f'v_mul_f32 v{vP+1}, v{vP+1}, v{vP+3}')
a(f'v_cvt_pk_bf16_f32 v{t1}, v{vP}, v{vP+1}')
a(f's_mul_i32 s3, s{S_W}, 144')
a(f's_add_u32 s3, s3, {L_HB}')
a(f'v_lshl_add_u32 v{t2}, v{V_LANE}, 2, s3')
a(f'v_cmp_gt_u32 vcc, 36, v{V_LANE}')
a('s_and_saveexec_b64 s[4:5], vcc')
a(f'ds_write_b32 v{t2}, v{t1}')
a('s_mov_b64 exec, s[4:5]')
a(f'v_mul_u32_u24 v{t2}, 36, v{V_G}')
a(f'v_add_u32 v{t2}, s3, v{t2}')
a('s_waitcnt lgkmcnt(0)')
for i in range(9):
    a(f'ds_read_b32 v{vX+i}, v{t2} offset:{4*i}')
a('s_waitcnt lgkmcnt(0)')
for t in range(18):
    aop(vA+4*(t%2), vX+t//2, selLo if t % 2 == 0 else selHi)
    a('s_nop 1')
    c = '0' if t == 0 else vr(accF,4)
    a(f'v_mfma_f32_16x16x32_bf16 {vr(accF,4)}, {vr(vA+4*(t%2),4)}, {vr(vWD+4*t,4)}, {c}')

a('s_barrier')
S_CC = 60
a(f's_mov_b32 s{S_CC}, {f32(LOG2E if MIMIC else SCALE*LOG2E):#x}')
a(f'v_lshlrev_b32 v{t1}, 2, v{vT}')
a(f'v_add_u32 v{t2}, {L_OW}, v{t1}')
for wv in range(4):
    a(f'ds_read_b32 v{vP+wv}, v{t2} offset:{wv*1024}')
a(f's_lshr_b32 s3, s{S_W}, 1')
a(f's_lshl_b32 s4, s3, 3')
a(f's_add_u32 s4, s4, {L_ML}')
a(f'v_mov_b32 v{t2}, s4')
for wv in range(4):
    a(f'ds_read_b64 {vr(vP+4+2*wv,2)}, v{t2} offset:{wv*16}')
a('s_waitcnt lgkmcnt(0)')
def combine(n, o, ml, outO, outM, outL, scr):
    a(f'v_max_f32 v{outM}, v{ml}, v{ml+2}')
    for i in range(2, n):
        a(f'v_max_f32 v{outM}, v{outM}, v{ml+2*i}')
    for i in range(n):
        a(f'v_sub_f32 v{ml+2*i}, v{ml+2*i}, v{outM}')
        a(f'v_mul_f32 v{ml+2*i}, s{S_CC}, v{ml+2*i}')
        a(f'v_exp_f32 v{ml+2*i}, v{ml+2*i}')
    a('s_nop 0')
    a(f'v_mul_f32 v{outO}, v{o}, v{ml}')
    a(f'v_mul_f32 v{outL}, v{ml+1}, v{ml}')
    for i in range(1, n):
        a(f'v_fmac_f32 v{outO}, v{o+i}, v{ml+2*i}')
        a(f'v_fmac_f32 v{outL}, v{ml+2*i+1}, v{ml+2*i}')
combine(4, vP, vP+4, t3, vX, vX+1, None)
a(f'buffer_store_dword v{t3}, v{t1}, s[{SD}:{SD+3}], s{S_REC} offen sc1')
a(f's_and_b32 s4, s{S_W}, 1')
a('s_cmp_lg_u32 s4, 0')
a('s_cbranch_scc1 L_noml')
a(f's_lshl_b32 s4, s3, 3')
a(f'v_mov_b32 v{t2}, s4')
a('s_mov_b64 s[4:5], exec')
a('s_mov_b64 exec, 1')
a(f'buffer_store_dwordx2 {vr(vX,2)}, v{t2}, s[{SD}:{SD+3}], s{S_REC} offen offset:1024 sc1')
a('s_mov_b64 exec, s[4:5]')
a.label('L_noml')
a(f's_andn2_b32 s4, s{S_REC}, {(8*2048)-1}')
a(f's_lshl_b32 s5, s3, 3')
a(f'v_mov_b32 v{t2}, s5')
a.label('L_poll1')
a('s_mov_b32 s5, s4')
for sp in range(8):
    a(f'buffer_load_dword v{vP+sp}, v{t1}, s[{SD}:{SD+3}], s5 offen sc1')
    a(f'buffer_load_dwordx2 {vr(vP+8+2*sp,2)}, v{t2}, s[{SD}:{SD+3}], s5 offen offset:1024 sc1')
    a('s_add_u32 s5, s5, 2048')
a('s_waitcnt vmcnt(0)')
a(f'v_max3_u32 v{t3}, v{vP}, v{vP+1}, v{vP+2}')
for i in range(3, 23, 2):
    a(f'v_max3_u32 v{t3}, v{t3}, v{vP+i}, v{vP+i+1}')
a(f'v_max_u32 v{t3}, v{t3}, v{vP+23}')
a(f'v_cmp_eq_u32 vcc, -1, v{t3}')
a('s_cbranch_vccnz L_poll1')
combine(8, vP, vP+8, t3, vX, vX+1, None)
a(f'v_rcp_f32 v{t4}, v{vX+1}')
a('s_nop 0')
a(f'v_mul_f32 v{t3}, v{t3}, v{t4}')
a(f'v_cvt_pk_bf16_f32 v{t3}, v{t3}, v{t3}')
a('s_nop 1')
for t in range(16):
    a('s_nop 0')
    a(f'v_mov_b32_dpp v{vX+2+(t%2)}, v{t3} row_newbcast:{t} row_mask:0xf bank_mask:0xf')
    aop(vA+4*(t%2), vX+2+(t%2), selLo)
    a('s_nop 1')
    c = '0' if t == 0 else vr(accA,4)
    a(f'v_mfma_f32_16x16x32_bf16 {vr(accA,4)}, {vr(vA+4*(t%2),4)}, {vr(vWO+4*t,4)}, {c}')
a(f's_lshl_b32 s3, s{S_W}, 10')
a(f's_add_u32 s3, s3, {L_YW}')
a(f'v_add_u32 v{t2}, s3, v{t0}')
a('s_nop 7')
a(f'ds_write_b128 v{t2}, {vr(accA,4)}')
a(f'ds_write_b128 v{t2}, {vr(accF,4)} offset:512')
a('s_waitcnt lgkmcnt(0)')
a('s_barrier')
a(f's_and_b32 s3, s{S_W}, 1')
a('s_lshl_b32 s3, s3, 6')
a(f'v_add_u32 v{t1}, s3, v{V_LANE}')
a(f's_lshr_b32 s4, s{S_W}, 1')
a(f's_lshl_b32 s5, s4, 9')
a(f's_add_u32 s5, s5, {L_YW}')
a(f'v_lshl_add_u32 v{t2}, v{t1}, 2, s5')
a(f'v_cmp_gt_u32 vcc, 72, v{t1}')
a('s_and_saveexec_b64 s[6:7], vcc')
a('s_cbranch_execz L_nopub')
for wv in range(4):
    a(f'ds_read_b32 v{vP+wv}, v{t2} offset:{wv*1024}')
a('s_waitcnt lgkmcnt(0)')
a(f'v_add_f32 v{vP}, v{vP}, v{vP+1}')
a(f'v_add_f32 v{vP+2}, v{vP+2}, v{vP+3}')
a(f'v_add_f32 v{vP}, v{vP}, v{vP+2}')
a(f's_mul_i32 s4, s4, 288')
a(f's_add_u32 s4, s4, s{S_YREC}')
a(f'v_lshlrev_b32 v{t1}, 2, v{t1}')
a(f'buffer_store_dword v{vP}, v{t1}, s[{SD}:{SD+3}], s4 offen sc1')
a.label('L_nopub')
a('s_mov_b64 exec, s[6:7]')
a(f's_or_b32 s3, s{S_HKV}, s{S_W}')
a('s_cmp_lg_u32 s3, 0')
a('s_cbranch_scc1 L_end')
a(f'v_cmp_gt_u32 vcc, 36, v{V_LANE}')
a('s_and_saveexec_b64 s[6:7], vcc')
a(f'v_lshlrev_b32 v{t1}, 3, v{V_LANE}')
vR2 = vW
a.label('L_poll2')
a(f's_mov_b32 s5, s{S_YREC}')
for k in range(16):
    a(f'buffer_load_dwordx2 {vr(vR2+4*k,2)}, v{t1}, s[{SD}:{SD+3}], s5 offen sc1')
    a(f'buffer_load_dwordx2 {vr(vR2+4*k+2,2)}, v{t1}, s[{SD}:{SD+3}], s5 offen offset:288 sc1')
    a('s_add_u32 s5, s5, 1024')
a('s_waitcnt vmcnt(0)')
a(f'v_max3_u32 v{t3}, v{vR2}, v{vR2+1}, v{vR2+2}')
for i in range(3, 63, 2):
    a(f'v_max3_u32 v{t3}, v{t3}, v{vR2+i}, v{vR2+i+1}')
a(f'v_max_u32 v{t3}, v{t3}, v{vR2+63}')
a(f'v_cmp_eq_u32 vcc, -1, v{t3}')
a('s_cbranch_vccnz L_poll2')
for k in range(1, 16):
    for r in range(4):
        a(f'v_add_f32 v{vR2+r}, v{vR2+r}, v{vR2+4*k+r}')
a(f'v_cvt_pk_bf16_f32 v{t2}, v{vR2}, v{vR2+1}')
a(f'v_cvt_pk_bf16_f32 v{t3}, v{vR2+2}, v{vR2+3}')
a(f'v_lshlrev_b32 v{vR2}, 16, v{t2}')
a(f'v_and_b32 v{vR2+1}, 0xffff0000, v{t2}')
a(f'v_lshlrev_b32 v{vR2+2}, 16, v{t3}')
a(f'v_and_b32 v{vR2+3}, 0xffff0000, v{t3}')
a(f'v_mul_f32 v{vR2}, s{S_G}, v{vR2}')
a(f'v_mul_f32 v{vR2+1}, s{S_G}, v{vR2+1}')
a(f'v_mul_f32 v{vR2+2}, s{S_OMG}, v{vR2+2}')
a(f'v_mul_f32 v{vR2+3}, s{S_OMG}, v{vR2+3}')
a(f'v_cvt_pk_bf16_f32 v{t2}, v{vR2}, v{vR2+1}')
a(f'v_cvt_pk_bf16_f32 v{t3}, v{vR2+2}, v{vR2+3}')
a(f'v_lshlrev_b32 v{vR2}, 16, v{t2}')
a(f'v_and_b32 v{vR2+1}, 0xffff0000, v{t2}')
a(f'v_lshlrev_b32 v{vR2+2}, 16, v{t3}')
a(f'v_and_b32 v{vR2+3}, 0xffff0000, v{t3}')
a(f'v_add_f32 v{vR2}, v{vR2}, v{vR2+2}')
a(f'v_add_f32 v{vR2+1}, v{vR2+1}, v{vR2+3}')
a(f'v_cvt_pk_bf16_f32 v{t2}, v{vR2}, v{vR2+1}')
a(f's_mul_i32 s3, s{S_B}, 1152')
a(f's_mul_i32 s4, s{S_SP}, 144')
a('s_add_u32 s3, s3, s4')
srd(SA, 28, None, 2304)
a(f'v_lshlrev_b32 v{t1}, 2, v{V_LANE}')
a(f'buffer_store_dword v{t2}, v{t1}, s[{SA}:{SA+3}], s3 offen')
a.label('L_end')
a('s_endpgm')

nv = max(stream_v, helper_v, va.n)
assert nv <= 256, nv
tail = f'''.section .rodata,"a"
.p2align 6
.amdhsa_kernel {NAME}
  .amdhsa_next_free_vgpr 256
  .amdhsa_next_free_sgpr 72
  .amdhsa_accum_offset 256
  .amdhsa_group_segment_fixed_size 0
  .amdhsa_kernarg_size 104
  .amdhsa_user_sgpr_count 2
  .amdhsa_user_sgpr_kernarg_segment_ptr 1
  .amdhsa_system_sgpr_workgroup_id_x 1
.end_amdhsa_kernel
'''
out = sys.argv[1] if len(sys.argv) > 1 else 'gated_mix__gqa_block_cached__geglu_ffn__decode.s'
open(out, 'w').write(print_top + a.text() + tail)
print('written', out, 'lds', LDS_BYTES, file=sys.stderr)
```

```python
import struct, sys

NAME = "gated_mix__gqa_block_cached__geglu_ffn__decode_kernel"

def f32(x): return struct.unpack('<I', struct.pack('<f', x))[0]

class Asm:
    def __init__(s): s.o = []; s.lab = 0
    def __call__(s, txt):
        for line in txt.strip('\n').split('\n'):
            s.o.append('    ' + line.strip())
    def label(s, name): s.o.append(name + ':')
    def newlab(s, p='L'): s.lab += 1; return f'{p}_{s.lab}'
    def text(s): return '\n'.join(s.o) + '\n'

class VAlloc:
    def __init__(s, start=0): s.n = start; s.hi = start
    def __call__(s, cnt=1, align=1):
        s.n = (s.n + align - 1)//align*align
        r = s.n; s.n += cnt; s.hi = max(s.hi, s.n); return r

def vr(b, n=1): return f'v{b}' if n == 1 else f'v[{b}:{b+n-1}]'

import os
E = lambda k, d: int(os.environ.get(k, d))
NU = 1
DEP = E('DEP', 6)
QDEP = E('QDEP', 44)
PDEP = E('PDEP', 6)
LOOK = E('LOOK', 5)
NSLOT = LOOK + 1
TB = 4096*NU
NT = 2048//NU
OPS = 1 + 8*NU
LTB = 12 if NU == 1 else 13
PRE_B1 = E('PRE_B1', 99)
PRE_B1 = min(PRE_B1, LOOK)
HPRIO = E('HPRIO', 3)
NSTATIC = E('NSTATIC', 52)
LIVE = NSTATIC - LOOK - 1
CWIT = E('CWIT', 20)
AHEAD = E('AHEAD', 3)
DYN = E('DYN', 0)
PRELATE = E('PRELATE', 0)
F1LATE = E('F1LATE', 1)
HD = E('HD', 0)
QROT = E('QROT', 0)
BATCH = E('BATCH', 2)
NOCOMP = E('NOCOMP', 0)
NOHELP = E('NOHELP', 0)
COOP = E('COOP', 1)
QSLEEP = E('QSLEEP', 4)
MAP = E('MAP', 1)
PFNT = E('PFNT', 1)
NOQ = E('NOQ', 0)
NOF1 = E('NOF1', 0)
NOPF = E('NOPF', 0)
CWAIT_AT = E('CWAIT_AT', 12)
WNT = E('WNT', 1)
PSLEEP = E('PSLEEP', 32)
QR = 32
EMPTY = 0xFFFFFFFF
ENDT = 0x40000000
SPRIO = E('SPRIO', 0)
NIT = 32
MIMIC = True

L_RING = 0
L_QP = 4*NSLOT*TB
L_QB = L_QP + 4096
L_OW = L_QB + 2048
L_ML = L_OW + 4096
L_F1R = L_ML + 64
L_HB = L_F1R + 8192
L_YW = L_HB + 1024
L_CNT = L_YW + 4096
LDS_BYTES = L_CNT + 64

WS_OP = 0
WS_YP = 256*2048
WS_FP = WS_YP + 256*1024
NF1 = 216
WS_QP = (2 << 20) + 65536
WS_FLAG = (2 << 20) + 16384
WS_CNT = 2 << 20

SENT = 0xFFFFFFFF
import os
TIMING = int(os.environ.get('TIMING', '0'))
DBGT = int(os.environ.get('DBGT', '0'))
WS_TS = 3 << 20
def stamp_start(idx, wavesel):
    if not TIMING: return
    l = a.newlab('L_ts')
    a(f's_cmp_lg_u32 s{S_WAVE}, {wavesel}')
    a(f's_cbranch_scc1 {l}')
    a(f's_lshl_b32 s67, s2, 7')
    a(f's_add_u32 s67, s67, {WS_TS + idx*4}')
    a('s_add_u32 s68, s32, s67')
    a('s_addc_u32 s69, s33, 0')
    a('v_mov_b32 v254, s72')
    a('v_mov_b32 v255, 0')
    a('global_store_dword v255, v254, s[68:69]')
    a.label(l)
def stamp(idx, wavesel):
    if not TIMING: return
    l = a.newlab('L_ts')
    a(f's_cmp_lg_u32 s{S_WAVE}, {wavesel}')
    a(f's_cbranch_scc1 {l}')
    a('s_memrealtime s[66:67]')
    a('s_waitcnt lgkmcnt(0)')
    a(f's_lshl_b32 s67, s2, 7')
    a(f's_add_u32 s67, s67, {WS_TS + idx*4}')
    a('s_add_u32 s68, s32, s67')
    a('s_addc_u32 s69, s33, 0')
    a('v_mov_b32 v254, s66')
    a('v_mov_b32 v255, 0')
    a('global_store_dword v255, v254, s[68:69]')
    a.label(l)

SCALE = 128 ** -0.5
LOG2E = 1.4426950408889634

a = Asm()

def srd(dst, plo, off_sgpr_lo, size, off_hi=None):
    if off_sgpr_lo is None:
        a(f's_mov_b32 s{dst}, s{plo}')
        a(f's_and_b32 s{dst+1}, s{plo+1}, 0xffff')
    else:
        a(f's_add_u32 s{dst}, s{plo}, {off_sgpr_lo}')
        a(f's_addc_u32 s{dst+1}, s{plo+1}, 0')
        a(f's_and_b32 s{dst+1}, s{dst+1}, 0xffff')
    a(f's_mov_b32 s{dst+2}, {size}')
    a(f's_mov_b32 s{dst+3}, 0x00020000')

def make_selectors(vlane, selLo, selHi, t0, t1):
    a(f'v_and_b32 v{t0}, 1, v{vlane}')
    a(f'v_cmp_eq_u32 vcc, 1, v{t0}')
    a(f'v_mov_b32 v{t0}, 0x0c0c0100')
    a(f'v_mov_b32 v{t1}, 0x01000c0c')
    a('s_nop 1')
    a(f'v_cndmask_b32 v{t0}, v{t0}, v{t1}, vcc')
    a(f'v_mov_b32 v{t1}, 0x0c0c0302')
    a(f'v_mov_b32 v{selHi}, 0x03020c0c')
    a(f'v_cndmask_b32 v{t1}, v{t1}, v{selHi}, vcc')
    a(f'v_bfe_u32 v{selHi+3}, v{vlane}, 1, 2')
    a(f'v_mov_b32 v{selLo+3}, 0x0c0c0c0c')
    for w in range(3):
        a(f'v_cmp_eq_u32 vcc, {w}, v{selHi+3}')
        a('s_nop 1')
        a(f'v_cndmask_b32 v{selLo+w}, v{selLo+3}, v{t0}, vcc')
        a(f'v_cndmask_b32 v{selHi+w}, v{selLo+3}, v{t1}, vcc')
    a(f'v_cmp_eq_u32 vcc, 3, v{selHi+3}')
    a('s_nop 1')
    a(f'v_cndmask_b32 v{selHi+3}, v{selLo+3}, v{t1}, vcc')
    a(f'v_cndmask_b32 v{selLo+3}, v{selLo+3}, v{t0}, vcc')

def aop(dst, src, sel):
    for w in range(4):
        a(f'v_perm_b32 v{dst+w}, v{src}, v{src}, v{sel+w}')

hdr = open('gated_mix__gqa_block_cached__geglu_ffn__decode.s.ref').read().split('\n')
top = []
for line in hdr:
    if line.startswith('; @launch'):
        top.append(f'; @launch grid=(256,1,1) block=(512,1,1) lds={LDS_BYTES}')
    elif line.startswith(';'):
        top.append(line)
    else:
        break
print_top = '\n'.join(top) + '\n'

a.o.append('.amdgcn_target "amdgcn-amd-amdhsa--gfx950"')
a.o.append('.text')
a.o.append(f'.globl {NAME}')
a.o.append('.p2align 8')
a.o.append(f'.type {NAME},@function')
a.label(NAME)

S_WAVE, S_HKV, S_B, S_SP, S_W = 34, 35, 36, 37, 38
a('s_cmp_ge_u32 s2, 256')
a('s_cbranch_scc1 L_end')
if TIMING or DBGT: a('s_memrealtime s[72:73]')
a('s_load_dwordx16 s[8:23], s[0:1], 0')
a('s_load_dwordx8 s[24:31], s[0:1], 64')
a('s_load_dwordx2 s[32:33], s[0:1], 96')
V_LANE = 1; V_G = 2; V_C = 3
a('v_lshrrev_b32 v4, 6, v0')
a(f'v_and_b32 v{V_LANE}, 63, v0')
a(f'v_readfirstlane_b32 s{S_WAVE}, v4')
a(f'v_lshrrev_b32 v{V_G}, 4, v{V_LANE}')
a(f'v_and_b32 v{V_C}, 15, v{V_LANE}')
if MAP == 0:
    a('s_and_b32 s3, s2, 7')
    a('s_lshr_b32 s4, s2, 3')
    a('s_lshr_b32 s5, s3, 1')
    a('s_lshl_b32 s5, s5, 2')
    a('s_and_b32 s6, s4, 3')
    a(f's_add_u32 s{S_HKV}, s5, s6')
    a('s_lshr_b32 s5, s4, 2')
    a(f's_and_b32 s{S_B}, s5, 1')
    a('s_lshr_b32 s5, s4, 3')
    a('s_lshl_b32 s5, s5, 1')
    a('s_and_b32 s6, s3, 1')
    a(f's_add_u32 s{S_SP}, s5, s6')
elif MAP == 3:
    a('s_and_b32 s3, s2, 7')
    a('s_lshr_b32 s4, s2, 3')
    a('s_lshl_b32 s3, s3, 1')
    a('s_and_b32 s5, s4, 1')
    a(f's_add_u32 s{S_HKV}, s3, s5')
    a('s_lshr_b32 s5, s4, 1')
    a(f's_and_b32 s{S_B}, s5, 1')
    a(f's_lshr_b32 s{S_SP}, s4, 2')
elif MAP == 1:
    a(f's_and_b32 s{S_SP}, s2, 7')
    a('s_lshr_b32 s4, s2, 3')
    a(f's_and_b32 s{S_HKV}, s4, 15')
    a(f's_lshr_b32 s{S_B}, s4, 4')
else:
    a('s_and_b32 s3, s2, 7')
    a('s_lshr_b32 s4, s2, 3')
    a('s_bfe_u32 s5, s3, 0x10001')
    a('s_lshl_b32 s5, s5, 3')
    a('s_and_b32 s6, s4, 7')
    a(f's_add_u32 s{S_HKV}, s5, s6')
    a('s_lshr_b32 s5, s4, 3')
    a(f's_and_b32 s{S_B}, s5, 1')
    a('s_lshr_b32 s5, s4, 4')
    a('s_lshl_b32 s5, s5, 2')
    a('s_lshr_b32 s6, s3, 2')
    a('s_lshl_b32 s6, s6, 1')
    a('s_add_u32 s5, s5, s6')
    a('s_and_b32 s6, s3, 1')
    a(f's_add_u32 s{S_SP}, s5, s6')
a(f's_and_b32 s{S_W}, s{S_WAVE}, 3')
a(f's_cmp_ge_u32 s{S_WAVE}, 4')
a('s_cbranch_scc1 L_helper')

va = VAlloc(4)
vKoff = va(4); vVoff = va(1); vKrd = va(4)
selLo = va(4); selHi = va(4)
vM = va(1); vMc = va(1); vL = va(1)
t0 = va(1); t1 = va(1); t2 = va(1); t3 = va(1)
acc = va(4, 4)
vQ = va(16, 4)
vKf = va(16, 4)
vS = va(4, 4)
vPk = va(4, 2)
vA = va(16, 4)
vV = va(16*NSLOT, 4)
print('streaming vgprs', va.n, file=sys.stderr)
stream_v = va.n

SK, SV = 40, 44
S_T0, S_RING, S_IT, S_C = 48, 50, 51, 52
S_MSAME = 54
NTILE = 64
if SPRIO: a(f's_setprio {SPRIO}')
for j in range(4):
    a(f'v_add_u32 v{t0}, {4*j}, v{V_G}')
    a(f'v_xor_b32 v{t0}, v{t0}, v{V_C}')
    a(f'v_lshlrev_b32 v{t0}, 4, v{t0}')
    a(f'v_lshl_add_u32 v{vKoff+j}, v{V_G}, 8, v{t0}')
a(f'v_lshlrev_b32 v{t0}, 4, v{V_C}')
a(f'v_lshl_add_u32 v{vVoff}, v{V_G}, 10, v{t0}')
a(f's_mul_i32 s{S_RING}, s{S_W}, {NSLOT*TB}')
for m in range(4):
    a(f'v_add_u32 v{t0}, {4*m}, v{V_G}')
    a(f'v_xor_b32 v{t0}, v{t0}, v{V_C}')
    a(f'v_lshlrev_b32 v{t0}, 4, v{t0}')
    a(f'v_lshl_add_u32 v{t0}, v{V_C}, 8, v{t0}')
    a(f'v_add_u32 v{vKrd+m}, s{S_RING}, v{t0}')
SCN = 76
vZero = va(1); vCl = va(2)
stream_v = va.n
S_T1 = 49
if DYN:
    a(f'v_mov_b32 v{vZero}, 0')
    a(f's_lshl_b32 s3, s{S_B}, 4')
    a(f's_add_u32 s3, s3, s{S_HKV}')
    a('s_lshl_b32 s4, s3, 8')
    a(f's_add_u32 s4, s4, {WS_CNT}')
    a('s_lshl_b32 s3, s3, 23')
    a(f's_mul_i32 s5, s{S_SP}, {4*NSTATIC}')
    a(f's_add_u32 s5, s5, s{S_W}')
    a(f's_lshl_b32 s{S_T0}, s5, 12')
    a(f's_mov_b32 s{S_T1}, s{S_T0}')
    a('s_waitcnt lgkmcnt(0)')
    srd(SK, 10, 's3', 1 << 23)
    srd(SV, 12, 's3', 1 << 23)
    srd(SCN, 32, 's4', 0)
else:
    a(f's_lshl_b32 s3, s{S_B}, 4')
    a(f's_add_u32 s3, s3, s{S_HKV}')
    a('s_lshl_b32 s3, s3, 3')
    a(f's_add_u32 s3, s3, s{S_SP}')
    a('s_lshl_b32 s3, s3, 20')
    a(f's_lshl_b32 s{S_T0}, s{S_W}, 12')
    a('s_waitcnt lgkmcnt(0)')
    srd(SK, 10, 's3', 1 << 20)
    srd(SV, 12, 's3', 1 << 20)
S_TL = 56
def claim():
    a(f's_waitcnt vmcnt({DEP-1})')
    a('s_mov_b64 exec, 1')
    a(f'v_mov_b32 v{vCl}, 1')
    a(f'buffer_atomic_add v{vCl}, v{vZero}, s[{SCN}:{SCN+3}], 0 offen sc0')
    a('s_mov_b64 exec, -1')

nissued = [0]
def issue_load(slot, k, dep=None):
    a(f's_waitcnt vmcnt({(dep or DEP)-1})')
    if k < 4:
        if k == 0:
            if DYN: a(f's_mov_b32 s{S_TL+slot}, s{S_T0}')
            a(f's_add_u32 m0, s{S_RING}, {slot*TB}')
            a('s_nop 0')
        a(f'buffer_load_dwordx4 v{vKoff+k}, s[{SK}:{SK+3}], s{S_T0} offen offset:{k*1024} nt lds')
    else:
        r = k-4
        b_ = vV + slot*16 + r*4
        a(f'buffer_load_dwordx4 {vr(b_,4)}, v{vVoff}, s[{SV}:{SV+3}], s{S_T0} offen offset:{r*256} nt')
        if k == 7 and not DYN: a(f's_add_u32 s{S_T0}, s{S_T0}, {4*TB}')

if PRELATE: a('s_barrier')
for t in range(LOOK):
    if DYN:
        claim()
    for k in range(8): issue_load(t, k, PDEP)
    if DYN:
        a(f's_add_u32 s{S_T1}, s{S_T1}, {4*TB}')
        a(f's_mov_b32 s{S_T0}, s{S_T1}')
make_selectors(V_LANE, selLo, selHi, t0, t1)
a(f'v_bfe_u32 v{t0}, v{V_LANE}, 3, 1')
a(f'v_lshrrev_b32 v{t1}, 5, v{V_LANE}')
a(f'v_cmp_eq_u32 s[{S_MSAME}:{S_MSAME+1}], v{t0}, v{t1}')
a(f'v_mov_b32 v{vM}, 0xff800000')
a(f'v_mov_b32 v{vMc}, 0xff800000')
a(f'v_mov_b32 v{vL}, 0')
for r in range(4): a(f'v_mov_b32 v{acc+r}, 0')
if MIMIC:
    a(f's_mov_b32 s{S_C}, {f32(LOG2E):#x}')
    a(f's_mov_b32 s{S_C+1}, {f32(SCALE):#x}')
else:
    a(f's_mov_b32 s{S_C}, {f32(SCALE*LOG2E):#x}')
stamp(0, 0)
stamp_start(12, 0)
if not PRELATE: a('s_barrier')
stamp(1, 0)
if COOP:
    a(f'v_bfe_u32 v{t1}, v{V_LANE}, 3, 1')
    a(f'v_lshlrev_b32 v{t1}, 8, v{t1}')
    a(f'v_lshl_add_u32 v{t1}, v{V_G}, 4, v{t1}')
    a(f'v_add_u32 v{t1}, {L_QB}, v{t1}')
    for m in range(4):
        a(f'ds_read_b128 {vr(vQ+4*m,4)}, v{t1} offset:{m*64}')
    a('s_waitcnt lgkmcnt(0)')
else:
    a(f'v_lshlrev_b32 v{t0}, 4, v{V_LANE}')
    a(f'v_add_u32 v{t0}, {L_QP}, v{t0}')
    for wv in range(4):
        a(f'ds_read_b128 {vr(vA+4*wv,4)}, v{t0} offset:{wv*1024}')
    a('s_waitcnt lgkmcnt(0)')
    for r in range(4):
        a(f'v_add_f32 v{vA+r}, v{vA+r}, v{vA+4+r}')
        a(f'v_add_f32 v{vA+8+r}, v{vA+8+r}, v{vA+12+r}')
    for r in range(4):
        a(f'v_add_f32 v{vA+r}, v{vA+r}, v{vA+8+r}')
    a(f'v_cvt_pk_bf16_f32 v{vPk}, v{vA}, v{vA+1}')
    a(f'v_cvt_pk_bf16_f32 v{vPk+1}, v{vA+2}, v{vA+3}')
    a(f's_lshl_b32 s3, s{S_W}, 9')
    a(f's_add_u32 s3, s3, {L_QB}')
    a(f'v_lshl_add_u32 v{t0}, v{V_LANE}, 3, s3')
    a(f'ds_write_b64 v{t0}, {vr(vPk,2)}')
    a(f'v_bfe_u32 v{t1}, v{V_LANE}, 3, 1')
    a(f'v_lshlrev_b32 v{t1}, 8, v{t1}')
    a(f'v_lshl_add_u32 v{t1}, v{V_G}, 4, v{t1}')
    a(f'v_add_u32 v{t1}, s3, v{t1}')
    a('s_waitcnt lgkmcnt(0)')
    for m in range(4):
        a(f'ds_read_b128 {vr(vQ+4*m,4)}, v{t1} offset:{m*64}')
    a('s_waitcnt lgkmcnt(0)')
a(f's_mov_b32 s{S_IT}, 0')
if TIMING: a('s_mov_b32 s74, 0'); a('s_mov_b32 s75, 0')
assert 8*LOOK - DEP >= 7 + LOOK
a.label('L_sloop')
if TIMING:
    l = a.newlab('L_tl')
    a(f's_cmp_lg_u32 s{S_WAVE}, 0')
    a(f's_cbranch_scc1 {l}')
    a('s_memrealtime s[66:67]')
    a('s_waitcnt lgkmcnt(0)')
    a(f's_lshl_b32 s67, s2, 7')
    a('s_lshl_b32 s68, s75, 2')
    a('s_add_u32 s67, s67, s68')
    a(f's_add_u32 s67, s67, {WS_TS + 64}')
    a('s_add_u32 s68, s32, s67')
    a('s_addc_u32 s69, s33, 0')
    a('v_mov_b32 v254, s66')
    a('v_mov_b32 v255, 0')
    a('global_store_dword v255, v254, s[68:69]')
    a('s_add_u32 s75, s75, 1')
    a.label(l)
for slot in range(NSLOT):
    nslot = (slot+LOOK) % NSLOT
    if DYN:
        a(f's_cmp_ge_u32 s{S_TL+slot}, {1<<23}')
        a('s_cbranch_scc1 L_send')
        if slot == LIVE % NSLOT:
            a(f's_cmp_eq_u32 s{S_IT}, {LIVE}')
            a('s_cbranch_scc1 L_golive')
            a.label('L_golive_back')
    else:
        a(f's_cmp_ge_u32 s{S_IT}, {NTILE}')
        a('s_cbranch_scc1 L_send')
    if slot == CWIT % NSLOT:
        a(f's_cmp_eq_u32 s{S_IT}, {CWIT}')
        a('s_cbranch_scc1 L_prog')
        a.label('L_prog_back')
    if DYN:
        a(f's_waitcnt vmcnt({DEP-1})')
        a(f'v_readfirstlane_b32 s3, v{vCl}')
        a(f's_add_u32 s3, s3, {32*NSTATIC}')
        a('s_lshl_b32 s4, s3, 12')
        a('s_cmp_lt_u32 s3, 2048')
        a(f's_cselect_b32 s4, s4, {ENDT:#x}')
        a(f's_cmp_lt_u32 s{S_IT}, {NSTATIC-LOOK}')
        a(f's_cselect_b32 s{S_T0}, s{S_T1}, s4')
        a(f's_add_u32 s{S_T1}, s{S_T1}, {4*TB}')
        claim()
    a(f's_add_u32 s{S_IT}, s{S_IT}, 1')
    issue_load(nslot, 0)
    for m in range(4):
        a(f'ds_read_b128 {vr(vKf+m*4,4)}, v{vKrd+m} offset:{slot*TB}')
    issue_load(nslot, 1)
    for m in range(4):
        a(f's_waitcnt lgkmcnt({3-m})')
        c = '0' if m == 0 else vr(vS,4)
        a(f'v_mfma_f32_16x16x32_bf16 {vr(vS,4)}, {vr(vKf+m*4,4)}, {vr(vQ+4*m,4)}, {c}')
    issue_load(nslot, 2)
    if NOCOMP:
        for k in range(3, 8): issue_load(nslot, k)
        continue
    a('s_nop 7')
    if MIMIC:
        for j in range(2):
            a(f'v_cvt_pk_bf16_f32 v{vPk+j}, v{vS+2*j}, v{vS+2*j+1}')
        for j in range(2):
            a(f'v_lshlrev_b32 v{vS+2*j}, 16, v{vPk+j}')
            a(f'v_and_b32 v{vS+2*j+1}, 0xffff0000, v{vPk+j}')
        for i in range(4):
            a(f'v_mul_f32 v{vS+i}, s{S_C+1}, v{vS+i}')
        for j in range(2):
            a(f'v_cvt_pk_bf16_f32 v{vPk+j}, v{vS+2*j}, v{vS+2*j+1}')
        for j in range(2):
            a(f'v_lshlrev_b32 v{vS+2*j}, 16, v{vPk+j}')
            a(f'v_and_b32 v{vS+2*j+1}, 0xffff0000, v{vPk+j}')
    a(f'v_max3_f32 v{t0}, v{vS}, v{vS+1}, v{vS+2}')
    a(f'v_max_f32 v{t0}, v{t0}, v{vS+3}')
    a(f'v_cmp_gt_f32 vcc, v{t0}, v{vM}')
    rare = f'L_rare_{slot}'; back = f'L_back_{slot}'
    a(f's_cbranch_vccnz {rare}')
    a.label(back)
    issue_load(nslot, 3)
    for i in range(4):
        a(f'v_fma_f32 v{vS+i}, v{vS+i}, s{S_C}, -v{vMc}')
    for i in range(4):
        a(f'v_exp_f32 v{vS+i}, v{vS+i}')
    issue_load(nslot, 4)
    for j in range(2):
        a(f'v_cvt_pk_bf16_f32 v{vPk+j}, v{vS+2*j}, v{vS+2*j+1}')
    a(f'v_add_f32 v{t0}, v{vS}, v{vS+1}')
    a(f'v_add_f32 v{t1}, v{vS+2}, v{vS+3}')
    a(f'v_add_f32 v{t0}, v{t0}, v{t1}')
    a(f'v_add_f32 v{vL}, v{vL}, v{t0}')
    issue_load(nslot, 5)
    for i in range(2):
        aop(vA+4*i, vPk+i//2, selLo if i % 2 == 0 else selHi)
    issue_load(nslot, 6)
    for i in range(2, 4):
        aop(vA+4*i, vPk+i//2, selLo if i % 2 == 0 else selHi)
    issue_load(nslot, 7)
    for i in range(4):
        b_ = vV + slot*16 + i*4
        a(f'v_mfma_f32_16x16x32_bf16 {vr(acc,4)}, {vr(vA+4*i,4)}, {vr(b_,4)}, {vr(acc,4)}')
a('s_branch L_sloop')
if DYN:
    a.label('L_golive')
    a(f's_lshl_b32 s3, s{S_W}, 2')
    a(f's_add_u32 s3, s3, {L_CNT+32}')
    a(f'v_mov_b32 v{t0}, s3')
    a.label('L_golive_spin')
    a(f'ds_read_b32 v{t1}, v{t0}')
    a('s_waitcnt lgkmcnt(0)')
    a(f'v_readfirstlane_b32 s3, v{t1}')
    a('s_cmp_eq_u32 s3, 0')
    a('s_cbranch_scc1 L_golive_spin')
    a(f's_mov_b32 s{SCN+2}, 4')
    a('s_branch L_golive_back')
a.label('L_prog')
a(f's_lshl_b32 s3, s{S_W}, 2')
a(f's_add_u32 s3, s3, {L_CNT+16}')
a(f'v_mov_b32 v{t0}, s3')
a(f'v_mov_b32 v{t1}, 1')
a(f'ds_write_b32 v{t0}, v{t1}')
a('s_branch L_prog_back')
a.label('L_send')
stamp(2, 0)

a(f'v_mov_b32 v{t0}, v{vL}')
a('s_nop 1')
a(f'v_permlane16_swap_b32 v{vL}, v{t0}')
a('s_nop 1')
a(f'v_add_f32 v{vL}, v{vL}, v{t0}')
a(f'v_mov_b32 v{t0}, v{vL}')
a('s_nop 1')
a(f'v_permlane32_swap_b32 v{vL}, v{t0}')
a('s_nop 1')
a(f'v_add_f32 v{vPk+1}, v{vL}, v{t0}')
a(f'v_mov_b32 v{vPk}, v{vM}')
a(f'v_lshrrev_b32 v{t0}, 1, v{V_G}')
a(f'v_lshlrev_b32 v{t0}, 9, v{t0}')
a(f'v_lshl_add_u32 v{t0}, v{V_C}, 5, v{t0}')
a(f'v_and_b32 v{t1}, 1, v{V_G}')
a(f'v_lshl_add_u32 v{t0}, v{t1}, 4, v{t0}')
a(f's_lshl_b32 s3, s{S_W}, 10')
a(f's_add_u32 s3, s3, {L_OW}')
a(f'v_add_u32 v{t0}, s3, v{t0}')
a('s_nop 7')
a(f'ds_write_b128 v{t0}, {vr(acc,4)}')
a(f'v_bfe_u32 v{t1}, v{V_LANE}, 3, 1')
a(f'v_lshlrev_b32 v{t1}, 3, v{t1}')
a(f's_lshl_b32 s3, s{S_W}, 4')
a(f's_add_u32 s3, s3, {L_ML}')
a(f'v_add_u32 v{t1}, s3, v{t1}')
a(f'ds_write_b64 v{t1}, {vr(vPk,2)}')
a('s_waitcnt lgkmcnt(0)')
a('s_barrier')
a('s_endpgm')
for slot in range(NSLOT if not NOCOMP else 0):
    a.label(f'L_rare_{slot}')
    a(f'v_max_f32 v{t0}, v{t0}, v{vM}')
    a(f'v_mov_b32 v{t1}, v{t0}')
    a('s_nop 1')
    a(f'v_permlane16_swap_b32 v{t0}, v{t1}')
    a('s_nop 1')
    a(f'v_max_f32 v{t0}, v{t0}, v{t1}')
    a(f'v_mov_b32 v{t1}, v{t0}')
    a('s_nop 1')
    a(f'v_permlane32_swap_b32 v{t0}, v{t1}')
    a('s_nop 1')
    a(f'v_max_f32 v{t0}, v{t0}, v{t1}')
    a(f'v_sub_f32 v{t1}, v{vM}, v{t0}')
    a(f'v_mul_f32 v{t1}, s{S_C}, v{t1}')
    a(f'v_exp_f32 v{t1}, v{t1}')
    a(f'v_mov_b32 v{vM}, v{t0}')
    a(f'v_mul_f32 v{vMc}, s{S_C}, v{t0}')
    a(f'v_mul_f32 v{vL}, v{vL}, v{t1}')
    a('s_nop 1')
    a(f'v_mov_b32_dpp v{t2}, v{t1} row_ror:8 row_mask:0xf bank_mask:0xf')
    a('s_nop 1')
    a(f'v_cndmask_b32 v{t2}, v{t2}, v{t1}, s[{S_MSAME}:{S_MSAME+1}]')
    for r in range(4):
        a(f'v_mul_f32 v{acc+r}, v{acc+r}, v{t2}')
    a('s_nop 1')
    a(f's_branch L_back_{slot}')

a.label('L_helper')
if HPRIO: a(f's_setprio {HPRIO}')
va = VAlloc(4)
selLo = va(4); selHi = va(4)
t0 = va(1); t1 = va(1); t2 = va(1); t3 = va(1); t4 = va(1); t5 = va(1)
vOff = va(1); vOff2 = va(1)
accQ = va(8, 4)
vA = va(8, 4)
vX = va(24, 4)
QD = QDEP
vW = va(176, 4)
print('helper vgprs', va.n, file=sys.stderr)
helper_v = va.n
SA, SB_, SC_, SD = 40, 44, 48, 52
S_O = 56; S_T = 57; S_G = 58; S_OMG = 59; S_C = 60
a(f'v_mov_b32 v{t0}, {L_CNT}')
a(f'v_mov_b32 v{t1}, 0')
a(f'v_lshl_add_u32 v{t0}, v{V_C}, 2, v{t0}')
a(f'ds_write_b32 v{t0}, v{t1}')
if NOHELP:
    a(f'v_mov_b32 v{t0}, {L_CNT+32}')
    a(f'v_mov_b32 v{t1}, 1')
    a(f'v_lshl_add_u32 v{t0}, v{V_G}, 2, v{t0}')
    a('s_waitcnt lgkmcnt(0)')
    a(f'ds_write_b32 v{t0}, v{t1}')
    a('s_waitcnt lgkmcnt(0)')
    a('s_barrier')
    a('s_branch L_claimstart')
S_KS, S_CB = 63, 64
vF = vW
vXF = vX + 12
vNon = vX + 16
def f1_issue():
    a(f's_mul_i32 s3, s2, 1821')
    a(f's_lshr_b32 s{S_KS}, s3, 16')
    a(f's_mul_i32 s3, s{S_KS}, 36')
    a(f's_sub_u32 s{S_CB}, s2, s3')
    a(f's_mul_i32 s3, s{S_KS}, 96')
    a(f's_mul_i32 s4, s{S_W}, 24')
    a('s_add_u32 s3, s3, s4')
    a(f'v_mul_u32_u24 v{t1}, 6, v{V_G}')
    a(f'v_add_u32 v{t1}, s3, v{t1}')
    a(f'v_mul_u32_u24 v{t4}, 9216, v{t1}')
    a(f'v_lshl_add_u32 v{t4}, v{V_C}, 4, v{t4}')
    a(f'v_bfe_u32 v{t2}, v{V_LANE}, 3, 1')
    a(f'v_mul_u32_u24 v{t2}, 1152, v{t2}')
    a(f'v_lshl_add_u32 v{t5}, v{t1}, 1, v{t2}')
    a(f's_lshl_b32 s3, s{S_CB}, 8')
    a(f's_sub_u32 s4, {576*9216}, s3')
    a(f's_cmp_ge_u32 s2, {NF1}')
    a('s_cselect_b32 s4, 0, s4')
    a('s_cselect_b32 s3, 0, s3')
    a('s_cselect_b32 s5, 0, 2304')
    if NOF1: a('s_mov_b32 s4, 0')
    srd(SA, 8, None, 's5')
    srd(SB_, 20, 's3', 's4')
    srd(SC_, 22, 's3', 's4')
    a(f'buffer_load_dwordx3 {vr(vXF,3)}, v{t5}, s[{SA}:{SA+3}], 0 offen')
    a(f's_mov_b32 s{S_O}, 0')
    for t in range(6):
        a(f'buffer_load_dwordx4 {vr(vF+8*t,4)}, v{t4}, s[{SB_}:{SB_+3}], s{S_O} offen nt')
        a(f'buffer_load_dwordx4 {vr(vF+8*t+4,4)}, v{t4}, s[{SC_}:{SC_+3}], s{S_O} offen nt')
        a(f's_add_u32 s{S_O}, s{S_O}, 9216')
if COOP:
    vWq = vW + 48
    a('s_memrealtime s[70:71]')
    a('s_waitcnt lgkmcnt(0)')
    srd(SD, 32, None, 4 << 20)
    a(f's_cmp_lg_u32 s{S_W}, 0')
    a('s_cbranch_scc1 L_hq_other')
    a(f's_lshl_b32 s6, s{S_B}, 3')
    a(f's_add_u32 s6, s6, s{S_SP}')
    a('s_mul_i32 s3, s6, 72')
    a(f'v_bfe_u32 v{t2}, v{V_LANE}, 3, 1')
    a(f'v_mul_u32_u24 v{t2}, 1152, v{t2}')
    a(f'v_lshl_add_u32 v{t2}, v{V_G}, 1, v{t2}')
    a(f'v_add_u32 v{vOff2}, s3, v{t2}')
    a(f'v_lshlrev_b32 v{t2}, 13, v{V_G}')
    a(f'v_lshl_add_u32 v{vOff}, v{V_C}, 4, v{t2}')
    a(f's_lshl_b32 s4, s{S_HKV}, 9')
    a(f's_sub_u32 s5, {576*8192}, s4')
    srd(SA, 8, None, 2304)
    srd(SB_, 14, 's4', 's5')
    if NOQ: a(f's_mov_b32 s{SB_+2}, 0')
    a(f's_mul_i32 s{S_O}, s6, {36*8192}')
    for t in range(9):
        a(f'buffer_load_dwordx4 {vr(vWq+8*t,4)}, v{vOff}, s[{SB_}:{SB_+3}], s{S_O} offen nt')
        a(f'buffer_load_dwordx4 {vr(vWq+8*t+4,4)}, v{vOff}, s[{SB_}:{SB_+3}], s{S_O} offen offset:256 nt')
        a(f's_add_u32 s{S_O}, s{S_O}, {4*8192}')
    for t in range(9):
        a(f'buffer_load_ushort v{vX+t}, v{vOff2}, s[{SA}:{SA+3}], 0 offen offset:{8*t}')
    if not F1LATE: f1_issue()
    a('s_or_b32 s70, s70, 1')
    a(f's_lshl_b32 s7, s{S_HKV}, 3')
    a('s_add_u32 s7, s7, 64')
    a(f'v_mov_b32 v{t3}, s7')
    a(f'v_mov_b32 v{vNon+4}, s70')
    a(f'v_mov_b32 v{vNon+5}, s71')
    a(f'v_mov_b32 v{vNon+6}, 0')
    a(f'v_mov_b32 v{vNon+7}, 0')
    a('s_mov_b64 exec, 1')
    a(f'global_atomic_cmpswap_x2 {vr(vNon,2)}, v{t3}, {vr(vNon+4,4)}, s[30:31] sc0')
    a('s_mov_b64 exec, -1')
    make_selectors(V_LANE, selLo, selHi, t0, t1)
    a(f's_waitcnt vmcnt({1 if F1LATE else 14})')
    stamp(3, 4)
    for t in range(9):
        aop(vA+4*(t%2), vX+t, selLo)
        a('s_nop 1')
        for cb in range(2):
            c = '0' if t == 0 else vr(accQ+4*cb,4)
            a(f'v_mfma_f32_16x16x32_bf16 {vr(accQ+4*cb,4)}, {vr(vA+4*(t%2),4)}, {vr(vWq+8*t+4*cb,4)}, {c}')
    a(f'v_and_b32 v{t1}, 1, v{V_G}')
    a(f'v_lshlrev_b32 v{t0}, 5, v{V_C}')
    a(f'v_lshl_add_u32 v{t0}, v{t1}, 4, v{t0}')
    a(f'v_lshrrev_b32 v{t1}, 1, v{V_G}')
    a(f'v_lshl_add_u32 v{t1}, v{t1}, 10, v{t0}')
    a(f's_lshl_b32 s3, s{S_HKV}, 4')
    a('s_add_u32 s3, s3, s6')
    a('s_lshl_b32 s3, s3, 11')
    a(f's_add_u32 s3, s3, {WS_QP}')
    a('s_nop 4')
    a(f'buffer_store_dwordx4 {vr(accQ,4)}, v{t1}, s[{SD}:{SD+3}], s3 offen sc1')
    a(f'buffer_store_dwordx4 {vr(accQ+4,4)}, v{t1}, s[{SD}:{SD+3}], s3 offen offset:512 sc1')
    a('s_waitcnt vmcnt(0)')
    stamp(14, 4)
    a(f'v_readfirstlane_b32 s4, v{vNon}')
    a(f'v_readfirstlane_b32 s5, v{vNon+1}')
    a('s_or_b32 s3, s4, s5')
    a('s_cmp_eq_u32 s3, 0')
    a('s_cselect_b32 s70, s70, s4')
    a('s_cselect_b32 s71, s71, s5')
    a(f'v_mov_b32 v{vNon}, s70')
    a(f'v_mov_b32 v{vNon+1}, s71')
    a(f's_lshl_b32 s3, s{S_HKV}, 7')
    a(f's_add_u32 s3, s3, {WS_FLAG}')
    a('s_lshl_b32 s4, s6, 3')
    a(f'v_mov_b32 v{t2}, s4')
    a('s_mov_b64 exec, 1')
    a(f'buffer_store_dwordx2 {vr(vNon,2)}, v{t2}, s[{SD}:{SD+3}], s3 offen sc1')
    a('s_mov_b64 exec, 0xffff')
    a(f'v_lshlrev_b32 v{t2}, 3, v{V_LANE}')
    a.label('L_qpoll')
    a(f'buffer_load_dwordx2 {vr(vA,2)}, v{t2}, s[{SD}:{SD+3}], s3 offen sc1')
    a('s_waitcnt vmcnt(0)')
    a(f'v_cmp_ne_u64 vcc, {vr(vA,2)}, {vr(vNon,2)}')
    a('s_cbranch_vccz L_qgo')
    a(f's_sleep {QSLEEP}')
    a('s_branch L_qpoll')
    a.label('L_qgo')
    a('s_mov_b64 exec, -1')
    stamp(15, 4)
    a(f's_lshl_b32 s3, s{S_HKV}, 15')
    a(f's_lshl_b32 s4, s{S_B}, 10')
    a('s_add_u32 s3, s3, s4')
    a(f's_add_u32 s3, s3, {WS_QP}')
    a(f'v_lshlrev_b32 v{t1}, 4, v{V_LANE}')
    for pi in range(16):
        a(f'buffer_load_dwordx4 {vr(vWq+4*pi,4)}, v{t1}, s[{SD}:{SD+3}], s3 offen sc1')
        a('s_add_u32 s3, s3, 2048')
    a('s_waitcnt vmcnt(0)')
    for st in (8, 4, 2, 1):
        for i in range(st):
            for r in range(4):
                a(f'v_add_f32 v{vWq+4*i+r}, v{vWq+4*i+r}, v{vWq+4*(i+st)+r}')
    a(f'v_cvt_pk_bf16_f32 v{vA}, v{vWq}, v{vWq+1}')
    a(f'v_cvt_pk_bf16_f32 v{vA+1}, v{vWq+2}, v{vWq+3}')
    a(f'v_lshlrev_b32 v{t1}, 3, v{V_LANE}')
    a(f'v_add_u32 v{t1}, {L_QB}, v{t1}')
    a(f'ds_write_b64 v{t1}, {vr(vA,2)}')
    a('s_branch L_hq_join')
    a.label('L_hq_other')
    if not F1LATE: f1_issue()
    make_selectors(V_LANE, selLo, selHi, t0, t1)
    a(f'v_and_b32 v{t1}, 1, v{V_G}')
    a(f'v_lshlrev_b32 v{t0}, 5, v{V_C}')
    a(f'v_lshl_add_u32 v{t0}, v{t1}, 4, v{t0}')
    a.label('L_hq_join')
    a('s_waitcnt lgkmcnt(0)')
    stamp(4, 4)
    stamp_start(13, 4)
    a('s_barrier')
    if F1LATE: f1_issue()
else:
    raise SystemExit('non-COOP path removed; use gen_v2.py')

vT = va(1)
a(f's_lshl_b32 s3, s{S_W}, 6')
a(f'v_add_u32 v{vT}, s3, v{V_LANE}')
srd(SD, 32, None, 4 << 20)
S_REC = 61; S_YREC = 62
a(f's_lshl_b32 s3, s{S_B}, 4')
a(f's_add_u32 s3, s3, s{S_HKV}')
a('s_lshl_b32 s3, s3, 3')
a(f's_add_u32 s3, s3, s{S_SP}')
a(f's_lshl_b32 s{S_REC}, s3, 11')
a(f's_lshl_b32 s3, s{S_B}, 3')
a(f's_add_u32 s3, s3, s{S_SP}')
a('s_lshl_b32 s3, s3, 4')
a(f's_add_u32 s3, s3, s{S_HKV}')
a('s_lshl_b32 s3, s3, 10')
a(f's_add_u32 s{S_YREC}, s3, {WS_YP}')
a(f'v_mov_b32 v{t1}, -1')
a(f'v_lshlrev_b32 v{t2}, 2, v{vT}')
a(f'buffer_store_dword v{t1}, v{t2}, s[{SD}:{SD+3}], s{S_REC} offen sc1')
a(f'buffer_store_dword v{t1}, v{t2}, s[{SD}:{SD+3}], s{S_YREC} offen sc1')
a(f'v_cmp_gt_u32 vcc, 4, v{vT}')
a('s_and_saveexec_b64 s[4:5], vcc')
a('s_cbranch_execz L_i1')
a(f'buffer_store_dword v{t1}, v{t2}, s[{SD}:{SD+3}], s{S_REC} offen offset:1024 sc1')
a.label('L_i1')
a('s_mov_b64 exec, s[4:5]')
S_GC = 65
a(f's_lshr_b32 s{S_GC}, s{S_REC}, 14')
a(f's_lshl_b32 s{S_GC}, s{S_GC}, 8')
a(f's_add_u32 s{S_GC}, s{S_GC}, {WS_CNT}')
a(f's_or_b32 s3, s{S_SP}, s{S_W}')
a('s_cmp_lg_u32 s3, 0')
a('s_cbranch_scc1 L_i2')
a(f'v_mov_b32 v{t1}, 0')
a('s_mov_b64 s[4:5], exec')
a('s_mov_b64 exec, 1')
a(f'buffer_store_dword v{t1}, v{t1}, s[{SD}:{SD+3}], s{S_GC} offen sc1')
a('s_mov_b64 exec, s[4:5]')
a.label('L_i2')

def softbar(idx):
    l = a.newlab('L_sb')
    a('s_waitcnt lgkmcnt(0)')
    a(f'v_mov_b32 v{t4}, {L_CNT + 4*idx}')
    a(f'v_mov_b32 v{t5}, 1')
    a('s_mov_b64 s[4:5], exec')
    a('s_mov_b64 exec, 1')
    a(f'ds_add_u32 v{t4}, v{t5}')
    a('s_mov_b64 exec, s[4:5]')
    a.label(l)
    a(f'ds_read_b32 v{t5}, v{t4}')
    a('s_waitcnt lgkmcnt(0)')
    a(f'v_readfirstlane_b32 s4, v{t5}')
    a('s_cmp_lt_u32 s4, 4')
    a(f's_cbranch_scc1 {l}')

a(f's_cmp_ge_u32 s2, {NF1}')
a('s_cbranch_scc1 L_nof1')
a('s_waitcnt vmcnt(2)')
for t in range(6):
    aop(vA+4*(t%2), vXF+t//2, selLo if t % 2 == 0 else selHi)
    a('s_nop 1')
    for mt in range(2):
        c = '0' if t == 0 else vr(accQ+4*mt,4)
        a(f'v_mfma_f32_16x16x32_bf16 {vr(accQ+4*mt,4)}, {vr(vA+4*(t%2),4)}, {vr(vF+8*t+4*mt,4)}, {c}')
a(f'v_lshrrev_b32 v{t1}, 1, v{V_G}')
a(f'v_lshl_add_u32 v{t1}, v{t1}, 9, v{t0}')
a(f's_lshl_b32 s3, s{S_W}, 11')
a(f's_add_u32 s3, s3, {L_F1R}')
a(f'v_add_u32 v{t1}, s3, v{t1}')
a('s_nop 7')
a(f'ds_write_b128 v{t1}, {vr(accQ,4)}')
a(f'ds_write_b128 v{t1}, {vr(accQ+4,4)} offset:1024')
softbar(0)
a(f'v_lshlrev_b32 v{t1}, 3, v{vT}')
a(f'v_add_u32 v{t1}, {L_F1R}, v{t1}')
for wv in range(4):
    a(f'ds_read_b64 {vr(vX+2*wv,2)}, v{t1} offset:{wv*2048}')
a('s_waitcnt lgkmcnt(0)')
for r in range(2):
    a(f'v_add_f32 v{vX+r}, v{vX+r}, v{vX+2+r}')
    a(f'v_add_f32 v{vX+4+r}, v{vX+4+r}, v{vX+6+r}')
for r in range(2):
    a(f'v_add_f32 v{vX+r}, v{vX+r}, v{vX+4+r}')
a(f's_lshl_b32 s3, s{S_KS}, 2')
a(f's_add_u32 s3, s3, s{S_W}')
a(f's_mul_i32 s3, s3, {4608*4}')
a(f's_lshl_b32 s4, s{S_CB}, 9')
a('s_add_u32 s3, s3, s4')
a(f's_add_u32 s3, s3, {WS_FP}')
a(f'v_lshlrev_b32 v{t1}, 3, v{V_LANE}')
a(f'buffer_store_dwordx2 {vr(vX,2)}, v{t1}, s[{SD}:{SD+3}], s3 offen sc1')
a.label('L_nof1')
a('s_waitcnt vmcnt(0)')
softbar(1)
a(f's_cmp_lg_u32 s{S_W}, 0')
a('s_cbranch_scc1 L_nosig')
a(f'v_mov_b32 v{t1}, 0')
a(f'v_mov_b32 v{t2}, 1')
a('s_mov_b64 s[4:5], exec')
a('s_mov_b64 exec, 1')
a(f'global_atomic_add v{t1}, v{t2}, s[30:31]')
a('s_mov_b64 exec, s[4:5]')
a.label('L_nosig')

stamp(5, 4)
vWD = vW; vWO = vW + 72; vP = vW + 72 + 64
assert vP + 40 <= vW + 176
accA = accQ; accF = accQ + 4
a(f's_cmp_eq_u32 s{S_SP}, 7')
a('s_cselect_b32 s6, 16, 8')
a(f'v_cmp_gt_u32 vcc, s6, v{V_C}')
a(f'v_lshlrev_b32 v{t1}, 4, v{V_C}')
a(f'v_mov_b32 v{t2}, 0x40000000')
a('s_nop 0')
a(f'v_cndmask_b32 v{t3}, v{t2}, v{t1}, vcc')
a(f's_mul_i32 s3, s{S_W}, {72*1152}')
a(f'v_mul_u32_u24 v{t1}, {18*1152}, v{V_G}')
a(f'v_add3_u32 v{vOff}, v{t1}, v{t3}, s3')
a(f's_mul_i32 s3, s{S_W}, {64*1152}')
a(f'v_mul_u32_u24 v{t1}, {16*1152}, v{V_G}')
a(f'v_add3_u32 v{vOff2}, v{t1}, v{t3}, s3')
a(f's_mul_i32 s3, s{S_HKV}, {288*1152}')
a(f's_lshl_b32 s4, s{S_SP}, 7')
a('s_add_u32 s3, s3, s4')
a(f's_sub_u32 s5, {4608*1152}, s3')
srd(SA, 24, 's3', 's5')
if NOPF: a(f's_mov_b32 s{SA+2}, 0')
a(f's_mul_i32 s3, s{S_HKV}, {256*1152}')
a('s_add_u32 s3, s3, s4')
a(f's_sub_u32 s5, {4096*1152}, s3')
srd(SB_, 16, 's3', 's5')
if NOPF: a(f's_mov_b32 s{SB_+2}, 0')
a(f's_mov_b32 s{S_O}, 0')
for t in range(18):
    if HD: a(f's_waitcnt vmcnt({HD-1})')
    a(f'buffer_load_dwordx4 {vr(vWD+4*t,4)}, v{vOff}, s[{SA}:{SA+3}], s{S_O} offen' + (' nt' if PFNT else ''))
    if t < 16:
        if HD: a(f's_waitcnt vmcnt({HD-1})')
        a(f'buffer_load_dwordx4 {vr(vWO+4*t,4)}, v{vOff2}, s[{SB_}:{SB_+3}], s{S_O} offen' + (' nt' if PFNT else ''))
    a(f's_add_u32 s{S_O}, s{S_O}, 1152')
a(f's_or_b32 s3, s{S_HKV}, s{S_W}')
a('s_cmp_lg_u32 s3, 0')
a('s_cbranch_scc1 L_nog')
a(f'v_cmp_gt_u32 vcc, 36, v{V_LANE}')
a(f'v_lshlrev_b32 v{t1}, 4, v{V_LANE}')
a(f'v_mov_b32 v{t2}, 0x40000000')
a('s_nop 0')
a(f'v_cndmask_b32 v{t1}, v{t2}, v{t1}, vcc')
a(f's_mul_i32 s3, s{S_B}, 1152')
srd(SC_, 8, 's3', 1152)
a(f'buffer_load_dwordx4 {vr(vP,4)}, v{t1}, s[{SC_}:{SC_+3}], 0 offen')
a(f'buffer_load_dwordx4 {vr(vP+4,4)}, v{t1}, s[{SC_}:{SC_+3}], 0 offen offset:576')
srd(SC_, 26, None, 1152)
a(f'buffer_load_dwordx4 {vr(vP+8,4)}, v{t1}, s[{SC_}:{SC_+3}], 0 offen')
a(f'buffer_load_dwordx4 {vr(vP+12,4)}, v{t1}, s[{SC_}:{SC_+3}], 0 offen offset:576')
a('s_waitcnt vmcnt(0)')
a(f'v_mov_b32 v{t4}, 0')
for i in range(8):
    a(f'v_lshlrev_b32 v{t1}, 16, v{vP+i}')
    a(f'v_lshlrev_b32 v{t2}, 16, v{vP+8+i}')
    a(f'v_and_b32 v{t3}, 0xffff0000, v{vP+i}')
    a(f'v_and_b32 v{t5}, 0xffff0000, v{vP+8+i}')
    a(f'v_mul_f32 v{t1}, v{t1}, v{t2}')
    a(f'v_mul_f32 v{t3}, v{t3}, v{t5}')
    a(f'v_cvt_pk_bf16_f32 v{t1}, v{t1}, v{t3}')
    a(f'v_lshlrev_b32 v{t2}, 16, v{t1}')
    a(f'v_and_b32 v{t3}, 0xffff0000, v{t1}')
    a(f'v_add_f32 v{t4}, v{t4}, v{t2}')
    a(f'v_add_f32 v{t4}, v{t4}, v{t3}')
def xreduce(v, tmp, op):
    for ror in (8, 4, 2, 1):
        a('s_nop 1')
        a(f'v_mov_b32_dpp v{tmp}, v{v} row_ror:{ror} row_mask:0xf bank_mask:0xf')
        a(f'{op} v{v}, v{v}, v{tmp}')
    for sw in ('v_permlane16_swap_b32', 'v_permlane32_swap_b32'):
        a(f'v_mov_b32 v{tmp}, v{v}')
        a('s_nop 1')
        a(f'{sw} v{v}, v{tmp}')
        a('s_nop 1')
        a(f'{op} v{v}, v{v}, v{tmp}')
xreduce(t4, t1, 'v_add_f32')
a(f'v_cvt_pk_bf16_f32 v{t1}, v{t4}, v{t4}')
a(f'v_lshlrev_b32 v{t1}, 16, v{t1}')
a(f'v_mul_f32 v{t1}, {f32(-LOG2E):#x}, v{t1}')
a(f'v_exp_f32 v{t1}, v{t1}')
a('s_nop 0')
a(f'v_add_f32 v{t1}, 1.0, v{t1}')
a(f'v_rcp_f32 v{t1}, v{t1}')
a('s_nop 0')
a(f'v_cvt_pk_bf16_f32 v{t1}, v{t1}, v{t1}')
a(f'v_lshlrev_b32 v{t1}, 16, v{t1}')
a(f'v_sub_f32 v{t2}, 1.0, v{t1}')
a(f'v_cvt_pk_bf16_f32 v{t2}, v{t2}, v{t2}')
a(f'v_lshlrev_b32 v{t2}, 16, v{t2}')
a('s_nop 0')
a(f'v_readfirstlane_b32 s{S_G}, v{t1}')
a(f'v_readfirstlane_b32 s{S_OMG}, v{t2}')
a.label('L_nog')

a(f's_lshl_b32 s6, s{S_W}, 2')
a(f's_add_u32 s6, s6, {L_CNT+16}')
a(f'v_mov_b32 v{t3}, s6')
a.label('L_pwait')
a(f'ds_read_b32 v{t4}, v{t3}')
a('s_waitcnt lgkmcnt(0)')
a(f'v_readfirstlane_b32 s3, v{t4}')
a('s_cmp_eq_u32 s3, 1')
a('s_cbranch_scc1 L_cwait')
a('s_sleep 16')
a('s_branch L_pwait')
a.label('L_cwait')
a(f'v_mov_b32 v{t1}, 0')
a(f'global_load_dword v{t2}, v{t1}, s[30:31] sc1')
a('s_waitcnt vmcnt(0)')
a(f'v_readfirstlane_b32 s3, v{t2}')
a('s_cmp_ge_u32 s3, 256')
a('s_cbranch_scc1 L_cdone')
a(f's_sleep {PSLEEP}')
a('s_branch L_cwait')
a.label('L_cdone')
a(f'v_mov_b32 v{t4}, 1')
a(f'ds_write_b32 v{t3}, v{t4} offset:16')

stamp(6, 4)
a(f'v_cmp_gt_u32 vcc, 36, v{V_LANE}')
a(f'v_lshlrev_b32 v{t1}, 3, v{V_LANE}')
a(f'v_mov_b32 v{t2}, 0x40000000')
a('s_nop 0')
a(f'v_cndmask_b32 v{t1}, v{t2}, v{t1}, vcc')
a(f's_mul_i32 s3, s{S_HKV}, {288*4}')
a(f's_mul_i32 s4, s{S_W}, {72*4}')
a('s_add_u32 s3, s3, s4')
a(f's_mul_i32 s4, s{S_B}, {4608*4}')
a('s_add_u32 s3, s3, s4')
a(f's_add_u32 s3, s3, {WS_FP}')
for ks in range(6):
    for mt in range(2):
        a(f'buffer_load_dwordx2 {vr(vP+2*(ks*2+mt),2)}, v{t1}, s[{SD}:{SD+3}], s3 offen sc1')
        a(f's_add_u32 s3, s3, {2*4608*4}')
a('s_waitcnt vmcnt(0)')
for mt in range(2):
    for r in range(2):
        for ks in range(1, 6):
            a(f'v_add_f32 v{vP+2*mt+r}, v{vP+2*mt+r}, v{vP+2*(ks*2+mt)+r}')
a(f'v_cvt_pk_bf16_f32 v{t1}, v{vP}, v{vP+1}')
a(f'v_cvt_pk_bf16_f32 v{t2}, v{vP+2}, v{vP+3}')
a(f'v_lshlrev_b32 v{vP}, 16, v{t1}')
a(f'v_and_b32 v{vP+1}, 0xffff0000, v{t1}')
a(f'v_lshlrev_b32 v{vP+2}, 16, v{t2}')
a(f'v_and_b32 v{vP+3}, 0xffff0000, v{t2}')
K0 = 0.7978845608028654; K1 = 0.044715
a(f's_mov_b32 s3, {f32(K1):#x}')
a(f's_mov_b32 s4, {f32(-2*LOG2E*K0):#x}')
for r in range(2):
    a(f'v_mul_f32 v{t1}, v{vP+r}, v{vP+r}')
    a(f'v_fma_f32 v{t1}, v{t1}, s3, 1.0')
    a(f'v_mul_f32 v{t1}, v{t1}, v{vP+r}')
    a(f'v_mul_f32 v{t1}, s4, v{t1}')
    a(f'v_exp_f32 v{t1}, v{t1}')
    a('s_nop 0')
    a(f'v_add_f32 v{t1}, 1.0, v{t1}')
    a(f'v_rcp_f32 v{t1}, v{t1}')
    a('s_nop 0')
    a(f'v_mul_f32 v{vP+r}, v{vP+r}, v{t1}')
a(f'v_cvt_pk_bf16_f32 v{t1}, v{vP}, v{vP+1}')
a(f'v_lshlrev_b32 v{vP}, 16, v{t1}')
a(f'v_and_b32 v{vP+1}, 0xffff0000, v{t1}')
a(f'v_mul_f32 v{vP}, v{vP}, v{vP+2}')
a(f'v_mul_f32 v{vP+1}, v{vP+1}, v{vP+3}')
a(f'v_cvt_pk_bf16_f32 v{t1}, v{vP}, v{vP+1}')
a(f's_mul_i32 s3, s{S_W}, 144')
a(f's_add_u32 s3, s3, {L_HB}')
a(f'v_lshl_add_u32 v{t2}, v{V_LANE}, 2, s3')
a(f'v_cmp_gt_u32 vcc, 36, v{V_LANE}')
a('s_and_saveexec_b64 s[4:5], vcc')
a(f'ds_write_b32 v{t2}, v{t1}')
a('s_mov_b64 exec, s[4:5]')
a(f'v_mul_u32_u24 v{t2}, 36, v{V_G}')
a(f'v_add_u32 v{t2}, s3, v{t2}')
a('s_waitcnt lgkmcnt(0)')
for i in range(9):
    a(f'ds_read_b32 v{vX+i}, v{t2} offset:{4*i}')
a('s_waitcnt lgkmcnt(0)')
for t in range(18):
    aop(vA+4*(t%2), vX+t//2, selLo if t % 2 == 0 else selHi)
    a('s_nop 1')
    c = '0' if t == 0 else vr(accF,4)
    a(f'v_mfma_f32_16x16x32_bf16 {vr(accF,4)}, {vr(vA+4*(t%2),4)}, {vr(vWD+4*t,4)}, {c}')

a.label('L_claimstart')
stamp(7, 4)
a('s_barrier')
stamp(8, 4)
if NOHELP: a('s_endpgm')
S_CC = 60
a(f's_mov_b32 s{S_CC}, {f32(LOG2E if MIMIC else SCALE*LOG2E):#x}')
a(f'v_lshlrev_b32 v{t1}, 2, v{vT}')
a(f'v_add_u32 v{t2}, {L_OW}, v{t1}')
for wv in range(4):
    a(f'ds_read_b32 v{vP+wv}, v{t2} offset:{wv*1024}')
a(f's_lshr_b32 s3, s{S_W}, 1')
a(f's_lshl_b32 s4, s3, 3')
a(f's_add_u32 s4, s4, {L_ML}')
a(f'v_mov_b32 v{t2}, s4')
for wv in range(4):
    a(f'ds_read_b64 {vr(vP+4+2*wv,2)}, v{t2} offset:{wv*16}')
a('s_waitcnt lgkmcnt(0)')
def combine(n, o, ml, outO, outM, outL, scr):
    a(f'v_max_f32 v{outM}, v{ml}, v{ml+2}')
    for i in range(2, n):
        a(f'v_max_f32 v{outM}, v{outM}, v{ml+2*i}')
    for i in range(n):
        a(f'v_sub_f32 v{ml+2*i}, v{ml+2*i}, v{outM}')
        a(f'v_mul_f32 v{ml+2*i}, s{S_CC}, v{ml+2*i}')
        a(f'v_exp_f32 v{ml+2*i}, v{ml+2*i}')
    a('s_nop 0')
    a(f'v_mul_f32 v{outO}, v{o}, v{ml}')
    a(f'v_mul_f32 v{outL}, v{ml+1}, v{ml}')
    for i in range(1, n):
        a(f'v_fmac_f32 v{outO}, v{o+i}, v{ml+2*i}')
        a(f'v_fmac_f32 v{outL}, v{ml+2*i+1}, v{ml+2*i}')
combine(4, vP, vP+4, t3, vX, vX+1, None)
a(f'buffer_store_dword v{t3}, v{t1}, s[{SD}:{SD+3}], s{S_REC} offen sc1')
a(f's_and_b32 s4, s{S_W}, 1')
a('s_cmp_lg_u32 s4, 0')
a('s_cbranch_scc1 L_noml')
a(f's_lshl_b32 s4, s3, 3')
a(f'v_mov_b32 v{t2}, s4')
a('s_mov_b64 s[4:5], exec')
a('s_mov_b64 exec, 1')
a(f'buffer_store_dwordx2 {vr(vX,2)}, v{t2}, s[{SD}:{SD+3}], s{S_REC} offen offset:1024 sc1')
a('s_mov_b64 exec, s[4:5]')
a.label('L_noml')
a(f's_andn2_b32 s4, s{S_REC}, {(8*2048)-1}')
a(f's_lshl_b32 s5, s3, 3')
a(f'v_mov_b32 v{t2}, s5')
a.label('L_poll1')
a('s_mov_b32 s5, s4')
for sp in range(8):
    a(f'buffer_load_dword v{vP+sp}, v{t1}, s[{SD}:{SD+3}], s5 offen sc1')
    a(f'buffer_load_dwordx2 {vr(vP+8+2*sp,2)}, v{t2}, s[{SD}:{SD+3}], s5 offen offset:1024 sc1')
    a('s_add_u32 s5, s5, 2048')
a('s_waitcnt vmcnt(0)')
a(f'v_max3_u32 v{t3}, v{vP}, v{vP+1}, v{vP+2}')
for i in range(3, 23, 2):
    a(f'v_max3_u32 v{t3}, v{t3}, v{vP+i}, v{vP+i+1}')
a(f'v_max_u32 v{t3}, v{t3}, v{vP+23}')
a(f'v_cmp_eq_u32 vcc, -1, v{t3}')
a('s_cbranch_vccnz L_poll1')
stamp(9, 4)
combine(8, vP, vP+8, t3, vX, vX+1, None)
a(f'v_rcp_f32 v{t4}, v{vX+1}')
a('s_nop 0')
a(f'v_mul_f32 v{t3}, v{t3}, v{t4}')
a(f'v_cvt_pk_bf16_f32 v{t3}, v{t3}, v{t3}')
a('s_nop 1')
for t in range(16):
    a('s_nop 0')
    a(f'v_mov_b32_dpp v{vX+2+(t%2)}, v{t3} row_newbcast:{t} row_mask:0xf bank_mask:0xf')
    aop(vA+4*(t%2), vX+2+(t%2), selLo)
    a('s_nop 1')
    c = '0' if t == 0 else vr(accA,4)
    a(f'v_mfma_f32_16x16x32_bf16 {vr(accA,4)}, {vr(vA+4*(t%2),4)}, {vr(vWO+4*t,4)}, {c}')
a(f's_lshl_b32 s3, s{S_W}, 10')
a(f's_add_u32 s3, s3, {L_YW}')
a(f'v_add_u32 v{t2}, s3, v{t0}')
a('s_nop 7')
a(f'ds_write_b128 v{t2}, {vr(accA,4)}')
a(f'ds_write_b128 v{t2}, {vr(accF,4)} offset:512')
a('s_waitcnt lgkmcnt(0)')
a('s_barrier')
a(f'v_lshlrev_b32 v{t1}, 2, v{vT}')
a(f'v_add_u32 v{t2}, {L_YW}, v{t1}')
for wv in range(4):
    a(f'ds_read_b32 v{vP+wv}, v{t2} offset:{wv*1024}')
a('s_waitcnt lgkmcnt(0)')
a(f'v_add_f32 v{vP}, v{vP}, v{vP+1}')
a(f'v_add_f32 v{vP+2}, v{vP+2}, v{vP+3}')
a(f'v_add_f32 v{vP}, v{vP}, v{vP+2}')
a(f'buffer_store_dword v{vP}, v{t1}, s[{SD}:{SD+3}], s{S_YREC} offen sc1')
stamp(10, 4)
a(f's_or_b32 s3, s{S_HKV}, s{S_W}')
a('s_cmp_lg_u32 s3, 0')
a('s_cbranch_scc1 L_end')
a(f's_cmp_eq_u32 s{S_SP}, 7')
a('s_cselect_b32 s6, 64, 32')
a(f'v_cmp_gt_u32 vcc, s6, v{V_LANE}')
a('s_and_saveexec_b64 s[6:7], vcc')
a(f'v_lshlrev_b32 v{t1}, 3, v{V_LANE}')
vR2 = vW
a.label('L_poll2')
a(f's_mov_b32 s5, s{S_YREC}')
for k in range(16):
    a(f'buffer_load_dwordx2 {vr(vR2+4*k,2)}, v{t1}, s[{SD}:{SD+3}], s5 offen sc1')
    a(f'buffer_load_dwordx2 {vr(vR2+4*k+2,2)}, v{t1}, s[{SD}:{SD+3}], s5 offen offset:512 sc1')
    a('s_add_u32 s5, s5, 1024')
a('s_waitcnt vmcnt(0)')
a(f'v_max3_u32 v{t3}, v{vR2}, v{vR2+1}, v{vR2+2}')
for i in range(3, 63, 2):
    a(f'v_max3_u32 v{t3}, v{t3}, v{vR2+i}, v{vR2+i+1}')
a(f'v_max_u32 v{t3}, v{t3}, v{vR2+63}')
a(f'v_cmp_eq_u32 vcc, -1, v{t3}')
a('s_cbranch_vccnz L_poll2')
stamp(11, 4)
for k in range(1, 16):
    for r in range(4):
        a(f'v_add_f32 v{vR2+r}, v{vR2+r}, v{vR2+4*k+r}')
a(f'v_cvt_pk_bf16_f32 v{t2}, v{vR2}, v{vR2+1}')
a(f'v_cvt_pk_bf16_f32 v{t3}, v{vR2+2}, v{vR2+3}')
a(f'v_lshlrev_b32 v{vR2}, 16, v{t2}')
a(f'v_and_b32 v{vR2+1}, 0xffff0000, v{t2}')
a(f'v_lshlrev_b32 v{vR2+2}, 16, v{t3}')
a(f'v_and_b32 v{vR2+3}, 0xffff0000, v{t3}')
a(f'v_mul_f32 v{vR2}, s{S_G}, v{vR2}')
a(f'v_mul_f32 v{vR2+1}, s{S_G}, v{vR2+1}')
a(f'v_mul_f32 v{vR2+2}, s{S_OMG}, v{vR2+2}')
a(f'v_mul_f32 v{vR2+3}, s{S_OMG}, v{vR2+3}')
a(f'v_cvt_pk_bf16_f32 v{t2}, v{vR2}, v{vR2+1}')
a(f'v_cvt_pk_bf16_f32 v{t3}, v{vR2+2}, v{vR2+3}')
a(f'v_lshlrev_b32 v{vR2}, 16, v{t2}')
a(f'v_and_b32 v{vR2+1}, 0xffff0000, v{t2}')
a(f'v_lshlrev_b32 v{vR2+2}, 16, v{t3}')
a(f'v_and_b32 v{vR2+3}, 0xffff0000, v{t3}')
a(f'v_add_f32 v{vR2}, v{vR2}, v{vR2+2}')
a(f'v_add_f32 v{vR2+1}, v{vR2+1}, v{vR2+3}')
a(f'v_cvt_pk_bf16_f32 v{t2}, v{vR2}, v{vR2+1}')
a(f's_mul_i32 s3, s{S_B}, 1152')
a(f's_lshl_b32 s4, s{S_SP}, 7')
a('s_add_u32 s3, s3, s4')
srd(SA, 28, None, 2304)
a(f'v_lshlrev_b32 v{t1}, 2, v{V_LANE}')
a(f'buffer_store_dword v{t2}, v{t1}, s[{SA}:{SA+3}], s3 offen')
if DBGT:
    a('s_memrealtime s[66:67]')
    a('s_waitcnt lgkmcnt(0)')
    a('s_sub_u32 s66, s66, s72')
    a(f's_lshl_b32 s3, s{S_B}, 3')
    a(f's_add_u32 s3, s3, s{S_SP}')
    a('s_and_b32 s3, s3, 7')
    a('s_lshl_b32 s3, s3, 2')
    a('s_add_u32 s3, s3, 16')
    a('v_mov_b32 v254, s66')
    a('v_mov_b32 v255, s3')
    a('s_mov_b64 exec, 1')
    a('global_store_dword v255, v254, s[30:31]')
a.label('L_end')
a('s_endpgm')

nv = max(stream_v, helper_v, va.n)
assert nv <= 256, nv
tail = f'''.section .rodata,"a"
.p2align 6
.amdhsa_kernel {NAME}
  .amdhsa_next_free_vgpr 256
  .amdhsa_next_free_sgpr 80
  .amdhsa_accum_offset 256
  .amdhsa_group_segment_fixed_size 0
  .amdhsa_kernarg_size 104
  .amdhsa_user_sgpr_count 2
  .amdhsa_user_sgpr_kernarg_segment_ptr 1
  .amdhsa_system_sgpr_workgroup_id_x 1
.end_amdhsa_kernel
'''
out = sys.argv[1] if len(sys.argv) > 1 else 'gated_mix__gqa_block_cached__geglu_ffn__decode.s'
open(out, 'w').write(print_top + a.text() + tail)
print('written', out, 'lds', LDS_BYTES, file=sys.stderr)
```

```python
import struct, sys

NAME = "gated_mix__gqa_block_cached__geglu_ffn__decode_kernel"

def f32(x): return struct.unpack('<I', struct.pack('<f', x))[0]

class Asm:
    def __init__(s): s.o = []; s.lab = 0
    def __call__(s, txt):
        for line in txt.strip('\n').split('\n'):
            s.o.append('    ' + line.strip())
    def label(s, name): s.o.append(name + ':')
    def newlab(s, p='L'): s.lab += 1; return f'{p}_{s.lab}'
    def text(s): return '\n'.join(s.o) + '\n'

class VAlloc:
    def __init__(s, start=0): s.n = start; s.hi = start
    def __call__(s, cnt=1, align=1):
        s.n = (s.n + align - 1)//align*align
        r = s.n; s.n += cnt; s.hi = max(s.hi, s.n); return r

def vr(b, n=1): return f'v{b}' if n == 1 else f'v[{b}:{b+n-1}]'

import os
E = lambda k, d: int(os.environ.get(k, d))
NU = 1
DEP = E('DEP', 6)
QDEP = E('QDEP', 44)
PDEP = E('PDEP', 6)
LOOK = E('LOOK', 5)
NSLOT = LOOK + 1
TB = 4096*NU
NT = 2048//NU
OPS = 1 + 8*NU
LTB = 12 if NU == 1 else 13
PRE_B1 = E('PRE_B1', 99)
PRE_B1 = min(PRE_B1, LOOK)
HPRIO = E('HPRIO', 3)
NSTATIC = E('NSTATIC', 52)
LIVE = NSTATIC - LOOK - 1
CWIT = E('CWIT', 20)
AHEAD = E('AHEAD', 3)
DYN = E('DYN', 0)
PRELATE = E('PRELATE', 0)
F1LATE = E('F1LATE', 1)
HD = E('HD', 0)
QROT = E('QROT', 0)
BATCH = E('BATCH', 2)
NOCOMP = E('NOCOMP', 0)
NOHELP = E('NOHELP', 0)
COOP = E('COOP', 1)
QSLEEP = E('QSLEEP', 4)
MAP = E('MAP', 1)
PFNT = E('PFNT', 1)
NOQ = E('NOQ', 0)
NOF1 = E('NOF1', 0)
NOPF = E('NOPF', 0)
CWAIT_AT = E('CWAIT_AT', 12)
WNT = E('WNT', 1)
PSLEEP = E('PSLEEP', 32)
QR = 32
EMPTY = 0xFFFFFFFF
ENDT = 0x40000000
SPRIO = E('SPRIO', 0)
NIT = 32
MIMIC = True

L_RING = 0
L_QP = 4*NSLOT*TB
L_QB = L_QP + 4096
L_OW = L_QB + 2048
L_ML = L_OW + 4096
L_F1R = L_ML + 64
L_HB = L_F1R + 8192
L_YW = L_HB + 1024
L_CNT = L_YW + 4096
LDS_BYTES = L_CNT + 64

WS_OP = 0
WS_YP = 256*2048
WS_FP = WS_YP + 256*1024
NF1 = 216
WS_QP = (2 << 20) + 65536
WS_FLAG = (2 << 20) + 16384
WS_CNT = 2 << 20

SENT = 0xFFFFFFFF
import os
TIMING = int(os.environ.get('TIMING', '0'))
DBGT = int(os.environ.get('DBGT', '0'))
WS_TS = 3 << 20
def stamp_start(idx, wavesel):
    if not TIMING: return
    l = a.newlab('L_ts')
    a(f's_cmp_lg_u32 s{S_WAVE}, {wavesel}')
    a(f's_cbranch_scc1 {l}')
    a(f's_lshl_b32 s67, s2, 7')
    a(f's_add_u32 s67, s67, {WS_TS + idx*4}')
    a('s_add_u32 s68, s32, s67')
    a('s_addc_u32 s69, s33, 0')
    a('v_mov_b32 v254, s72')
    a('v_mov_b32 v255, 0')
    a('global_store_dword v255, v254, s[68:69]')
    a.label(l)
def stamp(idx, wavesel):
    if not TIMING: return
    l = a.newlab('L_ts')
    a(f's_cmp_lg_u32 s{S_WAVE}, {wavesel}')
    a(f's_cbranch_scc1 {l}')
    a('s_memrealtime s[66:67]')
    a('s_waitcnt lgkmcnt(0)')
    a(f's_lshl_b32 s67, s2, 7')
    a(f's_add_u32 s67, s67, {WS_TS + idx*4}')
    a('s_add_u32 s68, s32, s67')
    a('s_addc_u32 s69, s33, 0')
    a('v_mov_b32 v254, s66')
    a('v_mov_b32 v255, 0')
    a('global_store_dword v255, v254, s[68:69]')
    a.label(l)

SCALE = 128 ** -0.5
LOG2E = 1.4426950408889634

a = Asm()

def srd(dst, plo, off_sgpr_lo, size, off_hi=None):
    if off_sgpr_lo is None:
        a(f's_mov_b32 s{dst}, s{plo}')
        a(f's_and_b32 s{dst+1}, s{plo+1}, 0xffff')
    else:
        a(f's_add_u32 s{dst}, s{plo}, {off_sgpr_lo}')
        a(f's_addc_u32 s{dst+1}, s{plo+1}, 0')
        a(f's_and_b32 s{dst+1}, s{dst+1}, 0xffff')
    a(f's_mov_b32 s{dst+2}, {size}')
    a(f's_mov_b32 s{dst+3}, 0x00020000')

def make_selectors(vlane, selLo, selHi, t0, t1):
    a(f'v_and_b32 v{t0}, 1, v{vlane}')
    a(f'v_cmp_eq_u32 vcc, 1, v{t0}')
    a(f'v_mov_b32 v{t0}, 0x0c0c0100')
    a(f'v_mov_b32 v{t1}, 0x01000c0c')
    a('s_nop 1')
    a(f'v_cndmask_b32 v{t0}, v{t0}, v{t1}, vcc')
    a(f'v_mov_b32 v{t1}, 0x0c0c0302')
    a(f'v_mov_b32 v{selHi}, 0x03020c0c')
    a(f'v_cndmask_b32 v{t1}, v{t1}, v{selHi}, vcc')
    a(f'v_bfe_u32 v{selHi+3}, v{vlane}, 1, 2')
    a(f'v_mov_b32 v{selLo+3}, 0x0c0c0c0c')
    for w in range(3):
        a(f'v_cmp_eq_u32 vcc, {w}, v{selHi+3}')
        a('s_nop 1')
        a(f'v_cndmask_b32 v{selLo+w}, v{selLo+3}, v{t0}, vcc')
        a(f'v_cndmask_b32 v{selHi+w}, v{selLo+3}, v{t1}, vcc')
    a(f'v_cmp_eq_u32 vcc, 3, v{selHi+3}')
    a('s_nop 1')
    a(f'v_cndmask_b32 v{selHi+3}, v{selLo+3}, v{t1}, vcc')
    a(f'v_cndmask_b32 v{selLo+3}, v{selLo+3}, v{t0}, vcc')

def aop(dst, src, sel):
    for w in range(4):
        a(f'v_perm_b32 v{dst+w}, v{src}, v{src}, v{sel+w}')

hdr = open('gated_mix__gqa_block_cached__geglu_ffn__decode.s.ref').read().split('\n')
top = []
for line in hdr:
    if line.startswith('; @launch'):
        top.append(f'; @launch grid=(256,1,1) block=(512,1,1) lds={LDS_BYTES}')
    elif line.startswith(';'):
        top.append(line)
    else:
        break
print_top = '\n'.join(top) + '\n'

a.o.append('.amdgcn_target "amdgcn-amd-amdhsa--gfx950"')
a.o.append('.text')
a.o.append(f'.globl {NAME}')
a.o.append('.p2align 8')
a.o.append(f'.type {NAME},@function')
a.label(NAME)

S_WAVE, S_HKV, S_B, S_SP, S_W = 34, 35, 36, 37, 38
a('s_cmp_ge_u32 s2, 256')
a('s_cbranch_scc1 L_end')
if TIMING or DBGT: a('s_memrealtime s[72:73]')
a('s_load_dwordx16 s[8:23], s[0:1], 0')
a('s_load_dwordx8 s[24:31], s[0:1], 64')
a('s_load_dwordx2 s[32:33], s[0:1], 96')
V_LANE = 1; V_G = 2; V_C = 3
a('v_lshrrev_b32 v4, 6, v0')
a(f'v_and_b32 v{V_LANE}, 63, v0')
a(f'v_readfirstlane_b32 s{S_WAVE}, v4')
a(f'v_lshrrev_b32 v{V_G}, 4, v{V_LANE}')
a(f'v_and_b32 v{V_C}, 15, v{V_LANE}')
if MAP == 0:
    a('s_and_b32 s3, s2, 7')
    a('s_lshr_b32 s4, s2, 3')
    a('s_lshr_b32 s5, s3, 1')
    a('s_lshl_b32 s5, s5, 2')
    a('s_and_b32 s6, s4, 3')
    a(f's_add_u32 s{S_HKV}, s5, s6')
    a('s_lshr_b32 s5, s4, 2')
    a(f's_and_b32 s{S_B}, s5, 1')
    a('s_lshr_b32 s5, s4, 3')
    a('s_lshl_b32 s5, s5, 1')
    a('s_and_b32 s6, s3, 1')
    a(f's_add_u32 s{S_SP}, s5, s6')
elif MAP == 3:
    a('s_and_b32 s3, s2, 7')
    a('s_lshr_b32 s4, s2, 3')
    a('s_lshl_b32 s3, s3, 1')
    a('s_and_b32 s5, s4, 1')
    a(f's_add_u32 s{S_HKV}, s3, s5')
    a('s_lshr_b32 s5, s4, 1')
    a(f's_and_b32 s{S_B}, s5, 1')
    a(f's_lshr_b32 s{S_SP}, s4, 2')
elif MAP == 1:
    a(f's_and_b32 s{S_SP}, s2, 7')
    a('s_lshr_b32 s4, s2, 3')
    a(f's_and_b32 s{S_HKV}, s4, 15')
    a(f's_lshr_b32 s{S_B}, s4, 4')
else:
    a('s_and_b32 s3, s2, 7')
    a('s_lshr_b32 s4, s2, 3')
    a('s_bfe_u32 s5, s3, 0x10001')
    a('s_lshl_b32 s5, s5, 3')
    a('s_and_b32 s6, s4, 7')
    a(f's_add_u32 s{S_HKV}, s5, s6')
    a('s_lshr_b32 s5, s4, 3')
    a(f's_and_b32 s{S_B}, s5, 1')
    a('s_lshr_b32 s5, s4, 4')
    a('s_lshl_b32 s5, s5, 2')
    a('s_lshr_b32 s6, s3, 2')
    a('s_lshl_b32 s6, s6, 1')
    a('s_add_u32 s5, s5, s6')
    a('s_and_b32 s6, s3, 1')
    a(f's_add_u32 s{S_SP}, s5, s6')
a(f's_and_b32 s{S_W}, s{S_WAVE}, 3')
a(f's_cmp_ge_u32 s{S_WAVE}, 4')
a('s_cbranch_scc1 L_helper')

va = VAlloc(4)
vKoff = va(4); vVoff = va(1); vKrd = va(4)
selLo = va(4); selHi = va(4)
vM = va(1); vMc = va(1); vL = va(1)
t0 = va(1); t1 = va(1); t2 = va(1); t3 = va(1)
acc = va(4, 4)
vQ = va(16, 4)
vKf = va(16, 4)
vS = va(4, 4)
vPk = va(4, 2)
vA = va(16, 4)
vV = va(16*NSLOT, 4)
print('streaming vgprs', va.n, file=sys.stderr)
stream_v = va.n

SK, SV = 40, 44
S_T0, S_RING, S_IT, S_C = 48, 50, 51, 52
S_MSAME = 54
NTILE = 64
if SPRIO: a(f's_setprio {SPRIO}')
for j in range(4):
    a(f'v_add_u32 v{t0}, {4*j}, v{V_G}')
    a(f'v_xor_b32 v{t0}, v{t0}, v{V_C}')
    a(f'v_lshlrev_b32 v{t0}, 4, v{t0}')
    a(f'v_lshl_add_u32 v{vKoff+j}, v{V_G}, 8, v{t0}')
a(f'v_lshlrev_b32 v{t0}, 4, v{V_C}')
a(f'v_lshl_add_u32 v{vVoff}, v{V_G}, 10, v{t0}')
a(f's_mul_i32 s{S_RING}, s{S_W}, {NSLOT*TB}')
for m in range(4):
    a(f'v_add_u32 v{t0}, {4*m}, v{V_G}')
    a(f'v_xor_b32 v{t0}, v{t0}, v{V_C}')
    a(f'v_lshlrev_b32 v{t0}, 4, v{t0}')
    a(f'v_lshl_add_u32 v{t0}, v{V_C}, 8, v{t0}')
    a(f'v_add_u32 v{vKrd+m}, s{S_RING}, v{t0}')
SCN = 76
vZero = va(1); vCl = va(2)
stream_v = va.n
S_T1 = 49
if DYN:
    a(f'v_mov_b32 v{vZero}, 0')
    a(f's_lshl_b32 s3, s{S_B}, 4')
    a(f's_add_u32 s3, s3, s{S_HKV}')
    a('s_lshl_b32 s4, s3, 8')
    a(f's_add_u32 s4, s4, {WS_CNT}')
    a('s_lshl_b32 s3, s3, 23')
    a(f's_mul_i32 s5, s{S_SP}, {4*NSTATIC}')
    a(f's_add_u32 s5, s5, s{S_W}')
    a(f's_lshl_b32 s{S_T0}, s5, 12')
    a(f's_mov_b32 s{S_T1}, s{S_T0}')
    a('s_waitcnt lgkmcnt(0)')
    srd(SK, 10, 's3', 1 << 23)
    srd(SV, 12, 's3', 1 << 23)
    srd(SCN, 32, 's4', 0)
else:
    a(f's_lshl_b32 s3, s{S_B}, 4')
    a(f's_add_u32 s3, s3, s{S_HKV}')
    a('s_lshl_b32 s3, s3, 3')
    a(f's_add_u32 s3, s3, s{S_SP}')
    a('s_lshl_b32 s3, s3, 20')
    a(f's_lshl_b32 s{S_T0}, s{S_W}, 12')
    a('s_waitcnt lgkmcnt(0)')
    srd(SK, 10, 's3', 1 << 20)
    srd(SV, 12, 's3', 1 << 20)
S_TL = 56
def claim():
    a(f's_waitcnt vmcnt({DEP-1})')
    a('s_mov_b64 exec, 1')
    a(f'v_mov_b32 v{vCl}, 1')
    a(f'buffer_atomic_add v{vCl}, v{vZero}, s[{SCN}:{SCN+3}], 0 offen sc0')
    a('s_mov_b64 exec, -1')

nissued = [0]
def issue_load(slot, k, dep=None):
    a(f's_waitcnt vmcnt({(dep or DEP)-1})')
    if k < 4:
        if k == 0:
            if DYN: a(f's_mov_b32 s{S_TL+slot}, s{S_T0}')
            a(f's_add_u32 m0, s{S_RING}, {slot*TB}')
            a('s_nop 0')
        a(f'buffer_load_dwordx4 v{vKoff+k}, s[{SK}:{SK+3}], s{S_T0} offen offset:{k*1024} nt lds')
    else:
        r = k-4
        b_ = vV + slot*16 + r*4
        a(f'buffer_load_dwordx4 {vr(b_,4)}, v{vVoff}, s[{SV}:{SV+3}], s{S_T0} offen offset:{r*256} nt')
        if k == 7 and not DYN: a(f's_add_u32 s{S_T0}, s{S_T0}, {4*TB}')

if PRELATE: a('s_barrier')
for t in range(LOOK):
    if DYN:
        claim()
    for k in range(8): issue_load(t, k, PDEP)
    if DYN:
        a(f's_add_u32 s{S_T1}, s{S_T1}, {4*TB}')
        a(f's_mov_b32 s{S_T0}, s{S_T1}')
make_selectors(V_LANE, selLo, selHi, t0, t1)
a(f'v_bfe_u32 v{t0}, v{V_LANE}, 3, 1')
a(f'v_lshrrev_b32 v{t1}, 5, v{V_LANE}')
a(f'v_cmp_eq_u32 s[{S_MSAME}:{S_MSAME+1}], v{t0}, v{t1}')
a(f'v_mov_b32 v{vM}, 0xff800000')
a(f'v_mov_b32 v{vMc}, 0xff800000')
a(f'v_mov_b32 v{vL}, 0')
for r in range(4): a(f'v_mov_b32 v{acc+r}, 0')
if MIMIC:
    a(f's_mov_b32 s{S_C}, {f32(LOG2E):#x}')
    a(f's_mov_b32 s{S_C+1}, {f32(SCALE):#x}')
else:
    a(f's_mov_b32 s{S_C}, {f32(SCALE*LOG2E):#x}')
stamp(0, 0)
stamp_start(12, 0)
if not PRELATE: a('s_barrier')
stamp(1, 0)
if DBGT:
    l = a.newlab('L_dbg')
    a('s_cmp_ge_u32 s2, 4')
    a(f's_cbranch_scc1 {l}')
    a(f's_cmp_lg_u32 s{S_WAVE}, 0')
    a(f's_cbranch_scc1 {l}')
    a('s_memrealtime s[66:67]')
    a('s_waitcnt lgkmcnt(0)')
    a('s_sub_u32 s66, s66, s72')
    a('s_lshl_b32 s3, s2, 3')
    a('s_add_u32 s3, s3, 32')
    a('v_mov_b32 v254, s66')
    a('v_mov_b32 v255, s3')
    a('global_store_dword v255, v254, s[30:31]')
    a.label(l)
if COOP:
    a(f'v_bfe_u32 v{t1}, v{V_LANE}, 3, 1')
    a(f'v_lshlrev_b32 v{t1}, 8, v{t1}')
    a(f'v_lshl_add_u32 v{t1}, v{V_G}, 4, v{t1}')
    a(f'v_add_u32 v{t1}, {L_QB}, v{t1}')
    for m in range(4):
        a(f'ds_read_b128 {vr(vQ+4*m,4)}, v{t1} offset:{m*64}')
    a('s_waitcnt lgkmcnt(0)')
else:
    a(f'v_lshlrev_b32 v{t0}, 4, v{V_LANE}')
    a(f'v_add_u32 v{t0}, {L_QP}, v{t0}')
    for wv in range(4):
        a(f'ds_read_b128 {vr(vA+4*wv,4)}, v{t0} offset:{wv*1024}')
    a('s_waitcnt lgkmcnt(0)')
    for r in range(4):
        a(f'v_add_f32 v{vA+r}, v{vA+r}, v{vA+4+r}')
        a(f'v_add_f32 v{vA+8+r}, v{vA+8+r}, v{vA+12+r}')
    for r in range(4):
        a(f'v_add_f32 v{vA+r}, v{vA+r}, v{vA+8+r}')
    a(f'v_cvt_pk_bf16_f32 v{vPk}, v{vA}, v{vA+1}')
    a(f'v_cvt_pk_bf16_f32 v{vPk+1}, v{vA+2}, v{vA+3}')
    a(f's_lshl_b32 s3, s{S_W}, 9')
    a(f's_add_u32 s3, s3, {L_QB}')
    a(f'v_lshl_add_u32 v{t0}, v{V_LANE}, 3, s3')
    a(f'ds_write_b64 v{t0}, {vr(vPk,2)}')
    a(f'v_bfe_u32 v{t1}, v{V_LANE}, 3, 1')
    a(f'v_lshlrev_b32 v{t1}, 8, v{t1}')
    a(f'v_lshl_add_u32 v{t1}, v{V_G}, 4, v{t1}')
    a(f'v_add_u32 v{t1}, s3, v{t1}')
    a('s_waitcnt lgkmcnt(0)')
    for m in range(4):
        a(f'ds_read_b128 {vr(vQ+4*m,4)}, v{t1} offset:{m*64}')
    a('s_waitcnt lgkmcnt(0)')
a(f's_mov_b32 s{S_IT}, 0')
if TIMING: a('s_mov_b32 s74, 0'); a('s_mov_b32 s75, 0')
assert 8*LOOK - DEP >= 7 + LOOK
a.label('L_sloop')
if TIMING:
    l = a.newlab('L_tl')
    a(f's_cmp_lg_u32 s{S_WAVE}, 0')
    a(f's_cbranch_scc1 {l}')
    a('s_memrealtime s[66:67]')
    a('s_waitcnt lgkmcnt(0)')
    a(f's_lshl_b32 s67, s2, 7')
    a('s_lshl_b32 s68, s75, 2')
    a('s_add_u32 s67, s67, s68')
    a(f's_add_u32 s67, s67, {WS_TS + 64}')
    a('s_add_u32 s68, s32, s67')
    a('s_addc_u32 s69, s33, 0')
    a('v_mov_b32 v254, s66')
    a('v_mov_b32 v255, 0')
    a('global_store_dword v255, v254, s[68:69]')
    a('s_add_u32 s75, s75, 1')
    a.label(l)
for slot in range(NSLOT):
    nslot = (slot+LOOK) % NSLOT
    if DYN:
        a(f's_cmp_ge_u32 s{S_TL+slot}, {1<<23}')
        a('s_cbranch_scc1 L_send')
        if slot == LIVE % NSLOT:
            a(f's_cmp_eq_u32 s{S_IT}, {LIVE}')
            a('s_cbranch_scc1 L_golive')
            a.label('L_golive_back')
    else:
        a(f's_cmp_ge_u32 s{S_IT}, {NTILE}')
        a('s_cbranch_scc1 L_send')
    if slot == CWIT % NSLOT:
        a(f's_cmp_eq_u32 s{S_IT}, {CWIT}')
        a('s_cbranch_scc1 L_prog')
        a.label('L_prog_back')
    if DYN:
        a(f's_waitcnt vmcnt({DEP-1})')
        a(f'v_readfirstlane_b32 s3, v{vCl}')
        a(f's_add_u32 s3, s3, {32*NSTATIC}')
        a('s_lshl_b32 s4, s3, 12')
        a('s_cmp_lt_u32 s3, 2048')
        a(f's_cselect_b32 s4, s4, {ENDT:#x}')
        a(f's_cmp_lt_u32 s{S_IT}, {NSTATIC-LOOK}')
        a(f's_cselect_b32 s{S_T0}, s{S_T1}, s4')
        a(f's_add_u32 s{S_T1}, s{S_T1}, {4*TB}')
        claim()
    a(f's_add_u32 s{S_IT}, s{S_IT}, 1')
    issue_load(nslot, 0)
    for m in range(4):
        a(f'ds_read_b128 {vr(vKf+m*4,4)}, v{vKrd+m} offset:{slot*TB}')
    issue_load(nslot, 1)
    for m in range(4):
        a(f's_waitcnt lgkmcnt({3-m})')
        c = '0' if m == 0 else vr(vS,4)
        a(f'v_mfma_f32_16x16x32_bf16 {vr(vS,4)}, {vr(vKf+m*4,4)}, {vr(vQ+4*m,4)}, {c}')
    issue_load(nslot, 2)
    if NOCOMP:
        for k in range(3, 8): issue_load(nslot, k)
        continue
    a('s_nop 7')
    if MIMIC:
        for j in range(2):
            a(f'v_cvt_pk_bf16_f32 v{vPk+j}, v{vS+2*j}, v{vS+2*j+1}')
        for j in range(2):
            a(f'v_lshlrev_b32 v{vS+2*j}, 16, v{vPk+j}')
            a(f'v_and_b32 v{vS+2*j+1}, 0xffff0000, v{vPk+j}')
        for i in range(4):
            a(f'v_mul_f32 v{vS+i}, s{S_C+1}, v{vS+i}')
        for j in range(2):
            a(f'v_cvt_pk_bf16_f32 v{vPk+j}, v{vS+2*j}, v{vS+2*j+1}')
        for j in range(2):
            a(f'v_lshlrev_b32 v{vS+2*j}, 16, v{vPk+j}')
            a(f'v_and_b32 v{vS+2*j+1}, 0xffff0000, v{vPk+j}')
    a(f'v_max3_f32 v{t0}, v{vS}, v{vS+1}, v{vS+2}')
    a(f'v_max_f32 v{t0}, v{t0}, v{vS+3}')
    a(f'v_cmp_gt_f32 vcc, v{t0}, v{vM}')
    rare = f'L_rare_{slot}'; back = f'L_back_{slot}'
    a(f's_cbranch_vccnz {rare}')
    a.label(back)
    issue_load(nslot, 3)
    for i in range(4):
        a(f'v_fma_f32 v{vS+i}, v{vS+i}, s{S_C}, -v{vMc}')
    for i in range(4):
        a(f'v_exp_f32 v{vS+i}, v{vS+i}')
    issue_load(nslot, 4)
    for j in range(2):
        a(f'v_cvt_pk_bf16_f32 v{vPk+j}, v{vS+2*j}, v{vS+2*j+1}')
    a(f'v_add_f32 v{t0}, v{vS}, v{vS+1}')
    a(f'v_add_f32 v{t1}, v{vS+2}, v{vS+3}')
    a(f'v_add_f32 v{t0}, v{t0}, v{t1}')
    a(f'v_add_f32 v{vL}, v{vL}, v{t0}')
    issue_load(nslot, 5)
    for i in range(2):
        aop(vA+4*i, vPk+i//2, selLo if i % 2 == 0 else selHi)
    issue_load(nslot, 6)
    for i in range(2, 4):
        aop(vA+4*i, vPk+i//2, selLo if i % 2 == 0 else selHi)
    issue_load(nslot, 7)
    for i in range(4):
        b_ = vV + slot*16 + i*4
        a(f'v_mfma_f32_16x16x32_bf16 {vr(acc,4)}, {vr(vA+4*i,4)}, {vr(b_,4)}, {vr(acc,4)}')
a('s_branch L_sloop')
if DYN:
    a.label('L_golive')
    a(f's_lshl_b32 s3, s{S_W}, 2')
    a(f's_add_u32 s3, s3, {L_CNT+32}')
    a(f'v_mov_b32 v{t0}, s3')
    a.label('L_golive_spin')
    a(f'ds_read_b32 v{t1}, v{t0}')
    a('s_waitcnt lgkmcnt(0)')
    a(f'v_readfirstlane_b32 s3, v{t1}')
    a('s_cmp_eq_u32 s3, 0')
    a('s_cbranch_scc1 L_golive_spin')
    a(f's_mov_b32 s{SCN+2}, 4')
    a('s_branch L_golive_back')
a.label('L_prog')
a(f's_lshl_b32 s3, s{S_W}, 2')
a(f's_add_u32 s3, s3, {L_CNT+16}')
a(f'v_mov_b32 v{t0}, s3')
a(f'v_mov_b32 v{t1}, 1')
a(f'ds_write_b32 v{t0}, v{t1}')
a('s_branch L_prog_back')
a.label('L_send')
stamp(2, 0)
if DBGT:
    l = a.newlab('L_dbg')
    a('s_cmp_ge_u32 s2, 4')
    a(f's_cbranch_scc1 {l}')
    a(f's_cmp_lg_u32 s{S_WAVE}, 0')
    a(f's_cbranch_scc1 {l}')
    a('s_memrealtime s[66:67]')
    a('s_waitcnt lgkmcnt(0)')
    a('s_sub_u32 s66, s66, s72')
    a('s_lshl_b32 s3, s2, 3')
    a('s_add_u32 s3, s3, 36')
    a('v_mov_b32 v254, s66')
    a('v_mov_b32 v255, s3')
    a('global_store_dword v255, v254, s[30:31]')
    a.label(l)

a(f'v_mov_b32 v{t0}, v{vL}')
a('s_nop 1')
a(f'v_permlane16_swap_b32 v{vL}, v{t0}')
a('s_nop 1')
a(f'v_add_f32 v{vL}, v{vL}, v{t0}')
a(f'v_mov_b32 v{t0}, v{vL}')
a('s_nop 1')
a(f'v_permlane32_swap_b32 v{vL}, v{t0}')
a('s_nop 1')
a(f'v_add_f32 v{vPk+1}, v{vL}, v{t0}')
a(f'v_mov_b32 v{vPk}, v{vM}')
a(f'v_lshrrev_b32 v{t0}, 1, v{V_G}')
a(f'v_lshlrev_b32 v{t0}, 9, v{t0}')
a(f'v_lshl_add_u32 v{t0}, v{V_C}, 5, v{t0}')
a(f'v_and_b32 v{t1}, 1, v{V_G}')
a(f'v_lshl_add_u32 v{t0}, v{t1}, 4, v{t0}')
a(f's_lshl_b32 s3, s{S_W}, 10')
a(f's_add_u32 s3, s3, {L_OW}')
a(f'v_add_u32 v{t0}, s3, v{t0}')
a('s_nop 7')
a(f'ds_write_b128 v{t0}, {vr(acc,4)}')
a(f'v_bfe_u32 v{t1}, v{V_LANE}, 3, 1')
a(f'v_lshlrev_b32 v{t1}, 3, v{t1}')
a(f's_lshl_b32 s3, s{S_W}, 4')
a(f's_add_u32 s3, s3, {L_ML}')
a(f'v_add_u32 v{t1}, s3, v{t1}')
a(f'ds_write_b64 v{t1}, {vr(vPk,2)}')
a('s_waitcnt lgkmcnt(0)')
a('s_barrier')
a('s_endpgm')
for slot in range(NSLOT if not NOCOMP else 0):
    a.label(f'L_rare_{slot}')
    a(f'v_max_f32 v{t0}, v{t0}, v{vM}')
    a(f'v_mov_b32 v{t1}, v{t0}')
    a('s_nop 1')
    a(f'v_permlane16_swap_b32 v{t0}, v{t1}')
    a('s_nop 1')
    a(f'v_max_f32 v{t0}, v{t0}, v{t1}')
    a(f'v_mov_b32 v{t1}, v{t0}')
    a('s_nop 1')
    a(f'v_permlane32_swap_b32 v{t0}, v{t1}')
    a('s_nop 1')
    a(f'v_max_f32 v{t0}, v{t0}, v{t1}')
    a(f'v_sub_f32 v{t1}, v{vM}, v{t0}')
    a(f'v_mul_f32 v{t1}, s{S_C}, v{t1}')
    a(f'v_exp_f32 v{t1}, v{t1}')
    a(f'v_mov_b32 v{vM}, v{t0}')
    a(f'v_mul_f32 v{vMc}, s{S_C}, v{t0}')
    a(f'v_mul_f32 v{vL}, v{vL}, v{t1}')
    a('s_nop 1')
    a(f'v_mov_b32_dpp v{t2}, v{t1} row_ror:8 row_mask:0xf bank_mask:0xf')
    a('s_nop 1')
    a(f'v_cndmask_b32 v{t2}, v{t2}, v{t1}, s[{S_MSAME}:{S_MSAME+1}]')
    for r in range(4):
        a(f'v_mul_f32 v{acc+r}, v{acc+r}, v{t2}')
    a('s_nop 1')
    a(f's_branch L_back_{slot}')

a.label('L_helper')
if HPRIO: a(f's_setprio {HPRIO}')
va = VAlloc(4)
selLo = va(4); selHi = va(4)
t0 = va(1); t1 = va(1); t2 = va(1); t3 = va(1); t4 = va(1); t5 = va(1)
vOff = va(1); vOff2 = va(1)
accQ = va(8, 4)
vA = va(8, 4)
vX = va(24, 4)
QD = QDEP
vW = va(176, 4)
print('helper vgprs', va.n, file=sys.stderr)
helper_v = va.n
SA, SB_, SC_, SD = 40, 44, 48, 52
S_O = 56; S_T = 57; S_G = 58; S_OMG = 59; S_C = 60
a(f'v_mov_b32 v{t0}, {L_CNT}')
a(f'v_mov_b32 v{t1}, 0')
a(f'v_lshl_add_u32 v{t0}, v{V_C}, 2, v{t0}')
a(f'ds_write_b32 v{t0}, v{t1}')
if NOHELP:
    a(f'v_mov_b32 v{t0}, {L_CNT+32}')
    a(f'v_mov_b32 v{t1}, 1')
    a(f'v_lshl_add_u32 v{t0}, v{V_G}, 2, v{t0}')
    a('s_waitcnt lgkmcnt(0)')
    a(f'ds_write_b32 v{t0}, v{t1}')
    a('s_waitcnt lgkmcnt(0)')
    a('s_barrier')
    a('s_branch L_claimstart')
S_KS, S_CB = 63, 64
vF = vW
vXF = vX + 12
vNon = vX + 16
def f1_issue():
    a(f's_mul_i32 s3, s2, 1821')
    a(f's_lshr_b32 s{S_KS}, s3, 16')
    a(f's_mul_i32 s3, s{S_KS}, 36')
    a(f's_sub_u32 s{S_CB}, s2, s3')
    a(f's_mul_i32 s3, s{S_KS}, 96')
    a(f's_mul_i32 s4, s{S_W}, 24')
    a('s_add_u32 s3, s3, s4')
    a(f'v_mul_u32_u24 v{t1}, 6, v{V_G}')
    a(f'v_add_u32 v{t1}, s3, v{t1}')
    a(f'v_mul_u32_u24 v{t4}, 9216, v{t1}')
    a(f'v_lshl_add_u32 v{t4}, v{V_C}, 4, v{t4}')
    a(f'v_bfe_u32 v{t2}, v{V_LANE}, 3, 1')
    a(f'v_mul_u32_u24 v{t2}, 1152, v{t2}')
    a(f'v_lshl_add_u32 v{t5}, v{t1}, 1, v{t2}')
    a(f's_lshl_b32 s3, s{S_CB}, 8')
    a(f's_sub_u32 s4, {576*9216}, s3')
    a(f's_cmp_ge_u32 s2, {NF1}')
    a('s_cselect_b32 s4, 0, s4')
    a('s_cselect_b32 s3, 0, s3')
    a('s_cselect_b32 s5, 0, 2304')
    if NOF1: a('s_mov_b32 s4, 0')
    srd(SA, 8, None, 's5')
    srd(SB_, 20, 's3', 's4')
    srd(SC_, 22, 's3', 's4')
    a(f'buffer_load_dwordx3 {vr(vXF,3)}, v{t5}, s[{SA}:{SA+3}], 0 offen')
    a(f's_mov_b32 s{S_O}, 0')
    for t in range(6):
        a(f'buffer_load_dwordx4 {vr(vF+8*t,4)}, v{t4}, s[{SB_}:{SB_+3}], s{S_O} offen nt')
        a(f'buffer_load_dwordx4 {vr(vF+8*t+4,4)}, v{t4}, s[{SC_}:{SC_+3}], s{S_O} offen nt')
        a(f's_add_u32 s{S_O}, s{S_O}, 9216')
if COOP:
    vWq = vW + 48
    a('s_memrealtime s[70:71]')
    a('s_waitcnt lgkmcnt(0)')
    srd(SD, 32, None, 4 << 20)
    a(f's_cmp_lg_u32 s{S_W}, 0')
    a('s_cbranch_scc1 L_hq_other')
    a(f's_lshl_b32 s6, s{S_B}, 3')
    a(f's_add_u32 s6, s6, s{S_SP}')
    a('s_mul_i32 s3, s6, 72')
    a(f'v_bfe_u32 v{t2}, v{V_LANE}, 3, 1')
    a(f'v_mul_u32_u24 v{t2}, 1152, v{t2}')
    a(f'v_lshl_add_u32 v{t2}, v{V_G}, 1, v{t2}')
    a(f'v_add_u32 v{vOff2}, s3, v{t2}')
    a(f'v_lshlrev_b32 v{t2}, 13, v{V_G}')
    a(f'v_lshl_add_u32 v{vOff}, v{V_C}, 4, v{t2}')
    a(f's_lshl_b32 s4, s{S_HKV}, 9')
    a(f's_sub_u32 s5, {576*8192}, s4')
    srd(SA, 8, None, 2304)
    srd(SB_, 14, 's4', 's5')
    if NOQ: a(f's_mov_b32 s{SB_+2}, 0')
    a(f's_mul_i32 s{S_O}, s6, {36*8192}')
    for t in range(9):
        a(f'buffer_load_dwordx4 {vr(vWq+8*t,4)}, v{vOff}, s[{SB_}:{SB_+3}], s{S_O} offen nt')
        a(f'buffer_load_dwordx4 {vr(vWq+8*t+4,4)}, v{vOff}, s[{SB_}:{SB_+3}], s{S_O} offen offset:256 nt')
        a(f's_add_u32 s{S_O}, s{S_O}, {4*8192}')
    for t in range(9):
        a(f'buffer_load_ushort v{vX+t}, v{vOff2}, s[{SA}:{SA+3}], 0 offen offset:{8*t}')
    if not F1LATE: f1_issue()
    a('s_or_b32 s70, s70, 1')
    a(f's_lshl_b32 s7, s{S_HKV}, 3')
    a('s_add_u32 s7, s7, 64')
    a(f'v_mov_b32 v{t3}, s7')
    a(f'v_mov_b32 v{vNon+4}, s70')
    a(f'v_mov_b32 v{vNon+5}, s71')
    a(f'v_mov_b32 v{vNon+6}, 0')
    a(f'v_mov_b32 v{vNon+7}, 0')
    a('s_mov_b64 exec, 1')
    a(f'global_atomic_cmpswap_x2 {vr(vNon,2)}, v{t3}, {vr(vNon+4,4)}, s[30:31] sc0')
    a('s_mov_b64 exec, -1')
    make_selectors(V_LANE, selLo, selHi, t0, t1)
    a(f's_waitcnt vmcnt({1 if F1LATE else 14})')
    stamp(3, 4)
    for t in range(9):
        aop(vA+4*(t%2), vX+t, selLo)
        a('s_nop 1')
        for cb in range(2):
            c = '0' if t == 0 else vr(accQ+4*cb,4)
            a(f'v_mfma_f32_16x16x32_bf16 {vr(accQ+4*cb,4)}, {vr(vA+4*(t%2),4)}, {vr(vWq+8*t+4*cb,4)}, {c}')
    a(f'v_and_b32 v{t1}, 1, v{V_G}')
    a(f'v_lshlrev_b32 v{t0}, 5, v{V_C}')
    a(f'v_lshl_add_u32 v{t0}, v{t1}, 4, v{t0}')
    a(f'v_lshrrev_b32 v{t1}, 1, v{V_G}')
    a(f'v_lshl_add_u32 v{t1}, v{t1}, 10, v{t0}')
    a(f's_lshl_b32 s3, s{S_HKV}, 4')
    a('s_add_u32 s3, s3, s6')
    a('s_lshl_b32 s3, s3, 11')
    a(f's_add_u32 s3, s3, {WS_QP}')
    a('s_nop 4')
    a(f'buffer_store_dwordx4 {vr(accQ,4)}, v{t1}, s[{SD}:{SD+3}], s3 offen sc1')
    a(f'buffer_store_dwordx4 {vr(accQ+4,4)}, v{t1}, s[{SD}:{SD+3}], s3 offen offset:512 sc1')
    a('s_waitcnt vmcnt(0)')
    stamp(14, 4)
    a(f'v_readfirstlane_b32 s4, v{vNon}')
    a(f'v_readfirstlane_b32 s5, v{vNon+1}')
    a('s_or_b32 s3, s4, s5')
    a('s_cmp_eq_u32 s3, 0')
    a('s_cselect_b32 s70, s70, s4')
    a('s_cselect_b32 s71, s71, s5')
    a(f'v_mov_b32 v{vNon}, s70')
    a(f'v_mov_b32 v{vNon+1}, s71')
    a(f's_lshl_b32 s3, s{S_HKV}, 7')
    a(f's_add_u32 s3, s3, {WS_FLAG}')
    a('s_lshl_b32 s4, s6, 3')
    a(f'v_mov_b32 v{t2}, s4')
    a('s_mov_b64 exec, 1')
    a(f'buffer_store_dwordx2 {vr(vNon,2)}, v{t2}, s[{SD}:{SD+3}], s3 offen sc1')
    a('s_mov_b64 exec, 0xffff')
    a(f'v_lshlrev_b32 v{t2}, 3, v{V_LANE}')
    a.label('L_qpoll')
    a(f'buffer_load_dwordx2 {vr(vA,2)}, v{t2}, s[{SD}:{SD+3}], s3 offen sc1')
    a('s_waitcnt vmcnt(0)')
    a(f'v_cmp_ne_u64 vcc, {vr(vA,2)}, {vr(vNon,2)}')
    a('s_cbranch_vccz L_qgo')
    a(f's_sleep {QSLEEP}')
    a('s_branch L_qpoll')
    a.label('L_qgo')
    a('s_mov_b64 exec, -1')
    stamp(15, 4)
    a(f's_lshl_b32 s3, s{S_HKV}, 15')
    a(f's_lshl_b32 s4, s{S_B}, 10')
    a('s_add_u32 s3, s3, s4')
    a(f's_add_u32 s3, s3, {WS_QP}')
    a(f'v_lshlrev_b32 v{t1}, 4, v{V_LANE}')
    for pi in range(16):
        a(f'buffer_load_dwordx4 {vr(vWq+4*pi,4)}, v{t1}, s[{SD}:{SD+3}], s3 offen sc1')
        a('s_add_u32 s3, s3, 2048')
    a('s_waitcnt vmcnt(0)')
    for st in (8, 4, 2, 1):
        for i in range(st):
            for r in range(4):
                a(f'v_add_f32 v{vWq+4*i+r}, v{vWq+4*i+r}, v{vWq+4*(i+st)+r}')
    a(f'v_cvt_pk_bf16_f32 v{vA}, v{vWq}, v{vWq+1}')
    a(f'v_cvt_pk_bf16_f32 v{vA+1}, v{vWq+2}, v{vWq+3}')
    a(f'v_lshlrev_b32 v{t1}, 3, v{V_LANE}')
    a(f'v_add_u32 v{t1}, {L_QB}, v{t1}')
    a(f'ds_write_b64 v{t1}, {vr(vA,2)}')
    a('s_branch L_hq_join')
    a.label('L_hq_other')
    if not F1LATE: f1_issue()
    make_selectors(V_LANE, selLo, selHi, t0, t1)
    a(f'v_and_b32 v{t1}, 1, v{V_G}')
    a(f'v_lshlrev_b32 v{t0}, 5, v{V_C}')
    a(f'v_lshl_add_u32 v{t0}, v{t1}, 4, v{t0}')
    a.label('L_hq_join')
    a('s_waitcnt lgkmcnt(0)')
    stamp(4, 4)
    stamp_start(13, 4)
    a('s_barrier')
    if F1LATE: f1_issue()
else:
    raise SystemExit('non-COOP path removed; use gen_v2.py')

vT = va(1)
a(f's_lshl_b32 s3, s{S_W}, 6')
a(f'v_add_u32 v{vT}, s3, v{V_LANE}')
srd(SD, 32, None, 4 << 20)
S_REC = 61; S_YREC = 62
a(f's_lshl_b32 s3, s{S_B}, 4')
a(f's_add_u32 s3, s3, s{S_HKV}')
a('s_lshl_b32 s3, s3, 3')
a(f's_add_u32 s3, s3, s{S_SP}')
a(f's_lshl_b32 s{S_REC}, s3, 11')
a(f's_lshl_b32 s3, s{S_B}, 3')
a(f's_add_u32 s3, s3, s{S_SP}')
a('s_lshl_b32 s3, s3, 4')
a(f's_add_u32 s3, s3, s{S_HKV}')
a('s_lshl_b32 s3, s3, 10')
a(f's_add_u32 s{S_YREC}, s3, {WS_YP}')
a(f'v_mov_b32 v{t1}, -1')
a(f'v_lshlrev_b32 v{t2}, 2, v{vT}')
a(f'buffer_store_dword v{t1}, v{t2}, s[{SD}:{SD+3}], s{S_REC} offen sc1')
a(f'buffer_store_dword v{t1}, v{t2}, s[{SD}:{SD+3}], s{S_YREC} offen sc1')
a(f'v_cmp_gt_u32 vcc, 4, v{vT}')
a('s_and_saveexec_b64 s[4:5], vcc')
a('s_cbranch_execz L_i1')
a(f'buffer_store_dword v{t1}, v{t2}, s[{SD}:{SD+3}], s{S_REC} offen offset:1024 sc1')
a.label('L_i1')
a('s_mov_b64 exec, s[4:5]')
S_GC = 65
a(f's_lshr_b32 s{S_GC}, s{S_REC}, 14')
a(f's_lshl_b32 s{S_GC}, s{S_GC}, 8')
a(f's_add_u32 s{S_GC}, s{S_GC}, {WS_CNT}')
a(f's_or_b32 s3, s{S_SP}, s{S_W}')
a('s_cmp_lg_u32 s3, 0')
a('s_cbranch_scc1 L_i2')
a(f'v_mov_b32 v{t1}, 0')
a('s_mov_b64 s[4:5], exec')
a('s_mov_b64 exec, 1')
a(f'buffer_store_dword v{t1}, v{t1}, s[{SD}:{SD+3}], s{S_GC} offen sc1')
a('s_mov_b64 exec, s[4:5]')
a.label('L_i2')

def softbar(idx):
    l = a.newlab('L_sb')
    a('s_waitcnt lgkmcnt(0)')
    a(f'v_mov_b32 v{t4}, {L_CNT + 4*idx}')
    a(f'v_mov_b32 v{t5}, 1')
    a('s_mov_b64 s[4:5], exec')
    a('s_mov_b64 exec, 1')
    a(f'ds_add_u32 v{t4}, v{t5}')
    a('s_mov_b64 exec, s[4:5]')
    a.label(l)
    a(f'ds_read_b32 v{t5}, v{t4}')
    a('s_waitcnt lgkmcnt(0)')
    a(f'v_readfirstlane_b32 s4, v{t5}')
    a('s_cmp_lt_u32 s4, 4')
    a(f's_cbranch_scc1 {l}')

a(f's_cmp_ge_u32 s2, {NF1}')
a('s_cbranch_scc1 L_nof1')
a('s_waitcnt vmcnt(2)')
for t in range(6):
    aop(vA+4*(t%2), vXF+t//2, selLo if t % 2 == 0 else selHi)
    a('s_nop 1')
    for mt in range(2):
        c = '0' if t == 0 else vr(accQ+4*mt,4)
        a(f'v_mfma_f32_16x16x32_bf16 {vr(accQ+4*mt,4)}, {vr(vA+4*(t%2),4)}, {vr(vF+8*t+4*mt,4)}, {c}')
a(f'v_lshrrev_b32 v{t1}, 1, v{V_G}')
a(f'v_lshl_add_u32 v{t1}, v{t1}, 9, v{t0}')
a(f's_lshl_b32 s3, s{S_W}, 11')
a(f's_add_u32 s3, s3, {L_F1R}')
a(f'v_add_u32 v{t1}, s3, v{t1}')
a('s_nop 7')
a(f'ds_write_b128 v{t1}, {vr(accQ,4)}')
a(f'ds_write_b128 v{t1}, {vr(accQ+4,4)} offset:1024')
softbar(0)
a(f'v_lshlrev_b32 v{t1}, 3, v{vT}')
a(f'v_add_u32 v{t1}, {L_F1R}, v{t1}')
for wv in range(4):
    a(f'ds_read_b64 {vr(vX+2*wv,2)}, v{t1} offset:{wv*2048}')
a('s_waitcnt lgkmcnt(0)')
for r in range(2):
    a(f'v_add_f32 v{vX+r}, v{vX+r}, v{vX+2+r}')
    a(f'v_add_f32 v{vX+4+r}, v{vX+4+r}, v{vX+6+r}')
for r in range(2):
    a(f'v_add_f32 v{vX+r}, v{vX+r}, v{vX+4+r}')
a(f's_lshl_b32 s3, s{S_KS}, 2')
a(f's_add_u32 s3, s3, s{S_W}')
a(f's_mul_i32 s3, s3, {4608*4}')
a(f's_lshl_b32 s4, s{S_CB}, 9')
a('s_add_u32 s3, s3, s4')
a(f's_add_u32 s3, s3, {WS_FP}')
a(f'v_lshlrev_b32 v{t1}, 3, v{V_LANE}')
a(f'buffer_store_dwordx2 {vr(vX,2)}, v{t1}, s[{SD}:{SD+3}], s3 offen sc1')
a.label('L_nof1')
a('s_waitcnt vmcnt(0)')
softbar(1)
a(f's_cmp_lg_u32 s{S_W}, 0')
a('s_cbranch_scc1 L_nosig')
a(f'v_mov_b32 v{t1}, 0')
a(f'v_mov_b32 v{t2}, 1')
a('s_mov_b64 s[4:5], exec')
a('s_mov_b64 exec, 1')
a(f'global_atomic_add v{t1}, v{t2}, s[30:31]')
a('s_mov_b64 exec, s[4:5]')
a.label('L_nosig')

stamp(5, 4)
vWD = vW; vWO = vW + 72; vP = vW + 72 + 64
assert vP + 40 <= vW + 176
accA = accQ; accF = accQ + 4
a(f's_cmp_eq_u32 s{S_SP}, 7')
a('s_cselect_b32 s6, 16, 8')
a(f'v_cmp_gt_u32 vcc, s6, v{V_C}')
a(f'v_lshlrev_b32 v{t1}, 4, v{V_C}')
a(f'v_mov_b32 v{t2}, 0x40000000')
a('s_nop 0')
a(f'v_cndmask_b32 v{t3}, v{t2}, v{t1}, vcc')
a(f's_mul_i32 s3, s{S_W}, {72*1152}')
a(f'v_mul_u32_u24 v{t1}, {18*1152}, v{V_G}')
a(f'v_add3_u32 v{vOff}, v{t1}, v{t3}, s3')
a(f's_mul_i32 s3, s{S_W}, {64*1152}')
a(f'v_mul_u32_u24 v{t1}, {16*1152}, v{V_G}')
a(f'v_add3_u32 v{vOff2}, v{t1}, v{t3}, s3')
a(f's_mul_i32 s3, s{S_HKV}, {288*1152}')
a(f's_lshl_b32 s4, s{S_SP}, 7')
a('s_add_u32 s3, s3, s4')
a(f's_sub_u32 s5, {4608*1152}, s3')
srd(SA, 24, 's3', 's5')
if NOPF: a(f's_mov_b32 s{SA+2}, 0')
a(f's_mul_i32 s3, s{S_HKV}, {256*1152}')
a('s_add_u32 s3, s3, s4')
a(f's_sub_u32 s5, {4096*1152}, s3')
srd(SB_, 16, 's3', 's5')
if NOPF: a(f's_mov_b32 s{SB_+2}, 0')
a(f's_mov_b32 s{S_O}, 0')
for t in range(18):
    if HD: a(f's_waitcnt vmcnt({HD-1})')
    a(f'buffer_load_dwordx4 {vr(vWD+4*t,4)}, v{vOff}, s[{SA}:{SA+3}], s{S_O} offen' + (' nt' if PFNT else ''))
    if t < 16:
        if HD: a(f's_waitcnt vmcnt({HD-1})')
        a(f'buffer_load_dwordx4 {vr(vWO+4*t,4)}, v{vOff2}, s[{SB_}:{SB_+3}], s{S_O} offen' + (' nt' if PFNT else ''))
    a(f's_add_u32 s{S_O}, s{S_O}, 1152')
a(f's_or_b32 s3, s{S_HKV}, s{S_W}')
a('s_cmp_lg_u32 s3, 0')
a('s_cbranch_scc1 L_nog')
a(f'v_cmp_gt_u32 vcc, 36, v{V_LANE}')
a(f'v_lshlrev_b32 v{t1}, 4, v{V_LANE}')
a(f'v_mov_b32 v{t2}, 0x40000000')
a('s_nop 0')
a(f'v_cndmask_b32 v{t1}, v{t2}, v{t1}, vcc')
a(f's_mul_i32 s3, s{S_B}, 1152')
srd(SC_, 8, 's3', 1152)
a(f'buffer_load_dwordx4 {vr(vP,4)}, v{t1}, s[{SC_}:{SC_+3}], 0 offen')
a(f'buffer_load_dwordx4 {vr(vP+4,4)}, v{t1}, s[{SC_}:{SC_+3}], 0 offen offset:576')
srd(SC_, 26, None, 1152)
a(f'buffer_load_dwordx4 {vr(vP+8,4)}, v{t1}, s[{SC_}:{SC_+3}], 0 offen')
a(f'buffer_load_dwordx4 {vr(vP+12,4)}, v{t1}, s[{SC_}:{SC_+3}], 0 offen offset:576')
a('s_waitcnt vmcnt(0)')
a(f'v_mov_b32 v{t4}, 0')
for i in range(8):
    a(f'v_lshlrev_b32 v{t1}, 16, v{vP+i}')
    a(f'v_lshlrev_b32 v{t2}, 16, v{vP+8+i}')
    a(f'v_and_b32 v{t3}, 0xffff0000, v{vP+i}')
    a(f'v_and_b32 v{t5}, 0xffff0000, v{vP+8+i}')
    a(f'v_mul_f32 v{t1}, v{t1}, v{t2}')
    a(f'v_mul_f32 v{t3}, v{t3}, v{t5}')
    a(f'v_cvt_pk_bf16_f32 v{t1}, v{t1}, v{t3}')
    a(f'v_lshlrev_b32 v{t2}, 16, v{t1}')
    a(f'v_and_b32 v{t3}, 0xffff0000, v{t1}')
    a(f'v_add_f32 v{t4}, v{t4}, v{t2}')
    a(f'v_add_f32 v{t4}, v{t4}, v{t3}')
def xreduce(v, tmp, op):
    for ror in (8, 4, 2, 1):
        a('s_nop 1')
        a(f'v_mov_b32_dpp v{tmp}, v{v} row_ror:{ror} row_mask:0xf bank_mask:0xf')
        a(f'{op} v{v}, v{v}, v{tmp}')
    for sw in ('v_permlane16_swap_b32', 'v_permlane32_swap_b32'):
        a(f'v_mov_b32 v{tmp}, v{v}')
        a('s_nop 1')
        a(f'{sw} v{v}, v{tmp}')
        a('s_nop 1')
        a(f'{op} v{v}, v{v}, v{tmp}')
xreduce(t4, t1, 'v_add_f32')
a(f'v_cvt_pk_bf16_f32 v{t1}, v{t4}, v{t4}')
a(f'v_lshlrev_b32 v{t1}, 16, v{t1}')
a(f'v_mul_f32 v{t1}, {f32(-LOG2E):#x}, v{t1}')
a(f'v_exp_f32 v{t1}, v{t1}')
a('s_nop 0')
a(f'v_add_f32 v{t1}, 1.0, v{t1}')
a(f'v_rcp_f32 v{t1}, v{t1}')
a('s_nop 0')
a(f'v_cvt_pk_bf16_f32 v{t1}, v{t1}, v{t1}')
a(f'v_lshlrev_b32 v{t1}, 16, v{t1}')
a(f'v_sub_f32 v{t2}, 1.0, v{t1}')
a(f'v_cvt_pk_bf16_f32 v{t2}, v{t2}, v{t2}')
a(f'v_lshlrev_b32 v{t2}, 16, v{t2}')
a('s_nop 0')
a(f'v_readfirstlane_b32 s{S_G}, v{t1}')
a(f'v_readfirstlane_b32 s{S_OMG}, v{t2}')
a.label('L_nog')

a(f's_lshl_b32 s6, s{S_W}, 2')
a(f's_add_u32 s6, s6, {L_CNT+16}')
a(f'v_mov_b32 v{t3}, s6')
a.label('L_pwait')
a(f'ds_read_b32 v{t4}, v{t3}')
a('s_waitcnt lgkmcnt(0)')
a(f'v_readfirstlane_b32 s3, v{t4}')
a('s_cmp_eq_u32 s3, 1')
a('s_cbranch_scc1 L_cwait')
a('s_sleep 16')
a('s_branch L_pwait')
a.label('L_cwait')
a(f'v_mov_b32 v{t1}, 0')
a(f'global_load_dword v{t2}, v{t1}, s[30:31] sc1')
a('s_waitcnt vmcnt(0)')
a(f'v_readfirstlane_b32 s3, v{t2}')
a('s_cmp_ge_u32 s3, 256')
a('s_cbranch_scc1 L_cdone')
a(f's_sleep {PSLEEP}')
a('s_branch L_cwait')
a.label('L_cdone')
a(f'v_mov_b32 v{t4}, 1')
a(f'ds_write_b32 v{t3}, v{t4} offset:16')

stamp(6, 4)
a(f'v_cmp_gt_u32 vcc, 36, v{V_LANE}')
a(f'v_lshlrev_b32 v{t1}, 3, v{V_LANE}')
a(f'v_mov_b32 v{t2}, 0x40000000')
a('s_nop 0')
a(f'v_cndmask_b32 v{t1}, v{t2}, v{t1}, vcc')
a(f's_mul_i32 s3, s{S_HKV}, {288*4}')
a(f's_mul_i32 s4, s{S_W}, {72*4}')
a('s_add_u32 s3, s3, s4')
a(f's_mul_i32 s4, s{S_B}, {4608*4}')
a('s_add_u32 s3, s3, s4')
a(f's_add_u32 s3, s3, {WS_FP}')
for ks in range(6):
    for mt in range(2):
        a(f'buffer_load_dwordx2 {vr(vP+2*(ks*2+mt),2)}, v{t1}, s[{SD}:{SD+3}], s3 offen sc1')
        a(f's_add_u32 s3, s3, {2*4608*4}')
a('s_waitcnt vmcnt(0)')
for mt in range(2):
    for r in range(2):
        for ks in range(1, 6):
            a(f'v_add_f32 v{vP+2*mt+r}, v{vP+2*mt+r}, v{vP+2*(ks*2+mt)+r}')
a(f'v_cvt_pk_bf16_f32 v{t1}, v{vP}, v{vP+1}')
a(f'v_cvt_pk_bf16_f32 v{t2}, v{vP+2}, v{vP+3}')
a(f'v_lshlrev_b32 v{vP}, 16, v{t1}')
a(f'v_and_b32 v{vP+1}, 0xffff0000, v{t1}')
a(f'v_lshlrev_b32 v{vP+2}, 16, v{t2}')
a(f'v_and_b32 v{vP+3}, 0xffff0000, v{t2}')
K0 = 0.7978845608028654; K1 = 0.044715
a(f's_mov_b32 s3, {f32(K1):#x}')
a(f's_mov_b32 s4, {f32(-2*LOG2E*K0):#x}')
for r in range(2):
    a(f'v_mul_f32 v{t1}, v{vP+r}, v{vP+r}')
    a(f'v_fma_f32 v{t1}, v{t1}, s3, 1.0')
    a(f'v_mul_f32 v{t1}, v{t1}, v{vP+r}')
    a(f'v_mul_f32 v{t1}, s4, v{t1}')
    a(f'v_exp_f32 v{t1}, v{t1}')
    a('s_nop 0')
    a(f'v_add_f32 v{t1}, 1.0, v{t1}')
    a(f'v_rcp_f32 v{t1}, v{t1}')
    a('s_nop 0')
    a(f'v_mul_f32 v{vP+r}, v{vP+r}, v{t1}')
a(f'v_cvt_pk_bf16_f32 v{t1}, v{vP}, v{vP+1}')
a(f'v_lshlrev_b32 v{vP}, 16, v{t1}')
a(f'v_and_b32 v{vP+1}, 0xffff0000, v{t1}')
a(f'v_mul_f32 v{vP}, v{vP}, v{vP+2}')
a(f'v_mul_f32 v{vP+1}, v{vP+1}, v{vP+3}')
a(f'v_cvt_pk_bf16_f32 v{t1}, v{vP}, v{vP+1}')
a(f's_mul_i32 s3, s{S_W}, 144')
a(f's_add_u32 s3, s3, {L_HB}')
a(f'v_lshl_add_u32 v{t2}, v{V_LANE}, 2, s3')
a(f'v_cmp_gt_u32 vcc, 36, v{V_LANE}')
a('s_and_saveexec_b64 s[4:5], vcc')
a(f'ds_write_b32 v{t2}, v{t1}')
a('s_mov_b64 exec, s[4:5]')
a(f'v_mul_u32_u24 v{t2}, 36, v{V_G}')
a(f'v_add_u32 v{t2}, s3, v{t2}')
a('s_waitcnt lgkmcnt(0)')
for i in range(9):
    a(f'ds_read_b32 v{vX+i}, v{t2} offset:{4*i}')
a('s_waitcnt lgkmcnt(0)')
for t in range(18):
    aop(vA+4*(t%2), vX+t//2, selLo if t % 2 == 0 else selHi)
    a('s_nop 1')
    c = '0' if t == 0 else vr(accF,4)
    a(f'v_mfma_f32_16x16x32_bf16 {vr(accF,4)}, {vr(vA+4*(t%2),4)}, {vr(vWD+4*t,4)}, {c}')

a.label('L_claimstart')
stamp(7, 4)
a('s_barrier')
stamp(8, 4)
if NOHELP: a('s_endpgm')
S_CC = 60
a(f's_mov_b32 s{S_CC}, {f32(LOG2E if MIMIC else SCALE*LOG2E):#x}')
a(f'v_lshlrev_b32 v{t1}, 2, v{vT}')
a(f'v_add_u32 v{t2}, {L_OW}, v{t1}')
for wv in range(4):
    a(f'ds_read_b32 v{vP+wv}, v{t2} offset:{wv*1024}')
a(f's_lshr_b32 s3, s{S_W}, 1')
a(f's_lshl_b32 s4, s3, 3')
a(f's_add_u32 s4, s4, {L_ML}')
a(f'v_mov_b32 v{t2}, s4')
for wv in range(4):
    a(f'ds_read_b64 {vr(vP+4+2*wv,2)}, v{t2} offset:{wv*16}')
a('s_waitcnt lgkmcnt(0)')
def combine(n, o, ml, outO, outM, outL, scr):
    a(f'v_max_f32 v{outM}, v{ml}, v{ml+2}')
    for i in range(2, n):
        a(f'v_max_f32 v{outM}, v{outM}, v{ml+2*i}')
    for i in range(n):
        a(f'v_sub_f32 v{ml+2*i}, v{ml+2*i}, v{outM}')
        a(f'v_mul_f32 v{ml+2*i}, s{S_CC}, v{ml+2*i}')
        a(f'v_exp_f32 v{ml+2*i}, v{ml+2*i}')
    a('s_nop 0')
    a(f'v_mul_f32 v{outO}, v{o}, v{ml}')
    a(f'v_mul_f32 v{outL}, v{ml+1}, v{ml}')
    for i in range(1, n):
        a(f'v_fmac_f32 v{outO}, v{o+i}, v{ml+2*i}')
        a(f'v_fmac_f32 v{outL}, v{ml+2*i+1}, v{ml+2*i}')
combine(4, vP, vP+4, t3, vX, vX+1, None)
a(f'buffer_store_dword v{t3}, v{t1}, s[{SD}:{SD+3}], s{S_REC} offen sc1')
a(f's_and_b32 s4, s{S_W}, 1')
a('s_cmp_lg_u32 s4, 0')
a('s_cbranch_scc1 L_noml')
a(f's_lshl_b32 s4, s3, 3')
a(f'v_mov_b32 v{t2}, s4')
a('s_mov_b64 s[4:5], exec')
a('s_mov_b64 exec, 1')
a(f'buffer_store_dwordx2 {vr(vX,2)}, v{t2}, s[{SD}:{SD+3}], s{S_REC} offen offset:1024 sc1')
a('s_mov_b64 exec, s[4:5]')
a.label('L_noml')
a(f's_andn2_b32 s4, s{S_REC}, {(8*2048)-1}')
a(f's_lshl_b32 s5, s3, 3')
a(f'v_mov_b32 v{t2}, s5')
a.label('L_poll1')
a('s_mov_b32 s5, s4')
for sp in range(8):
    a(f'buffer_load_dword v{vP+sp}, v{t1}, s[{SD}:{SD+3}], s5 offen sc1')
    a(f'buffer_load_dwordx2 {vr(vP+8+2*sp,2)}, v{t2}, s[{SD}:{SD+3}], s5 offen offset:1024 sc1')
    a('s_add_u32 s5, s5, 2048')
a('s_waitcnt vmcnt(0)')
a(f'v_max3_u32 v{t3}, v{vP}, v{vP+1}, v{vP+2}')
for i in range(3, 23, 2):
    a(f'v_max3_u32 v{t3}, v{t3}, v{vP+i}, v{vP+i+1}')
a(f'v_max_u32 v{t3}, v{t3}, v{vP+23}')
a(f'v_cmp_eq_u32 vcc, -1, v{t3}')
a('s_cbranch_vccnz L_poll1')
stamp(9, 4)
combine(8, vP, vP+8, t3, vX, vX+1, None)
a(f'v_rcp_f32 v{t4}, v{vX+1}')
a('s_nop 0')
a(f'v_mul_f32 v{t3}, v{t3}, v{t4}')
a(f'v_cvt_pk_bf16_f32 v{t3}, v{t3}, v{t3}')
a('s_nop 1')
for t in range(16):
    a('s_nop 0')
    a(f'v_mov_b32_dpp v{vX+2+(t%2)}, v{t3} row_newbcast:{t} row_mask:0xf bank_mask:0xf')
    aop(vA+4*(t%2), vX+2+(t%2), selLo)
    a('s_nop 1')
    c = '0' if t == 0 else vr(accA,4)
    a(f'v_mfma_f32_16x16x32_bf16 {vr(accA,4)}, {vr(vA+4*(t%2),4)}, {vr(vWO+4*t,4)}, {c}')
a(f's_lshl_b32 s3, s{S_W}, 10')
a(f's_add_u32 s3, s3, {L_YW}')
a(f'v_add_u32 v{t2}, s3, v{t0}')
a('s_nop 7')
a(f'ds_write_b128 v{t2}, {vr(accA,4)}')
a(f'ds_write_b128 v{t2}, {vr(accF,4)} offset:512')
a('s_waitcnt lgkmcnt(0)')
a('s_barrier')
a(f'v_lshlrev_b32 v{t1}, 2, v{vT}')
a(f'v_add_u32 v{t2}, {L_YW}, v{t1}')
for wv in range(4):
    a(f'ds_read_b32 v{vP+wv}, v{t2} offset:{wv*1024}')
a('s_waitcnt lgkmcnt(0)')
a(f'v_add_f32 v{vP}, v{vP}, v{vP+1}')
a(f'v_add_f32 v{vP+2}, v{vP+2}, v{vP+3}')
a(f'v_add_f32 v{vP}, v{vP}, v{vP+2}')
a(f'buffer_store_dword v{vP}, v{t1}, s[{SD}:{SD+3}], s{S_YREC} offen sc1')
stamp(10, 4)
a(f's_or_b32 s3, s{S_HKV}, s{S_W}')
a('s_cmp_lg_u32 s3, 0')
a('s_cbranch_scc1 L_end')
a(f's_cmp_eq_u32 s{S_SP}, 7')
a('s_cselect_b32 s6, 64, 32')
a(f'v_cmp_gt_u32 vcc, s6, v{V_LANE}')
a('s_and_saveexec_b64 s[6:7], vcc')
a(f'v_lshlrev_b32 v{t1}, 3, v{V_LANE}')
vR2 = vW
a.label('L_poll2')
a(f's_mov_b32 s5, s{S_YREC}')
for k in range(16):
    a(f'buffer_load_dwordx2 {vr(vR2+4*k,2)}, v{t1}, s[{SD}:{SD+3}], s5 offen sc1')
    a(f'buffer_load_dwordx2 {vr(vR2+4*k+2,2)}, v{t1}, s[{SD}:{SD+3}], s5 offen offset:512 sc1')
    a('s_add_u32 s5, s5, 1024')
a('s_waitcnt vmcnt(0)')
a(f'v_max3_u32 v{t3}, v{vR2}, v{vR2+1}, v{vR2+2}')
for i in range(3, 63, 2):
    a(f'v_max3_u32 v{t3}, v{t3}, v{vR2+i}, v{vR2+i+1}')
a(f'v_max_u32 v{t3}, v{t3}, v{vR2+63}')
a(f'v_cmp_eq_u32 vcc, -1, v{t3}')
a('s_cbranch_vccnz L_poll2')
stamp(11, 4)
for k in range(1, 16):
    for r in range(4):
        a(f'v_add_f32 v{vR2+r}, v{vR2+r}, v{vR2+4*k+r}')
a(f'v_cvt_pk_bf16_f32 v{t2}, v{vR2}, v{vR2+1}')
a(f'v_cvt_pk_bf16_f32 v{t3}, v{vR2+2}, v{vR2+3}')
a(f'v_lshlrev_b32 v{vR2}, 16, v{t2}')
a(f'v_and_b32 v{vR2+1}, 0xffff0000, v{t2}')
a(f'v_lshlrev_b32 v{vR2+2}, 16, v{t3}')
a(f'v_and_b32 v{vR2+3}, 0xffff0000, v{t3}')
a(f'v_mul_f32 v{vR2}, s{S_G}, v{vR2}')
a(f'v_mul_f32 v{vR2+1}, s{S_G}, v{vR2+1}')
a(f'v_mul_f32 v{vR2+2}, s{S_OMG}, v{vR2+2}')
a(f'v_mul_f32 v{vR2+3}, s{S_OMG}, v{vR2+3}')
a(f'v_cvt_pk_bf16_f32 v{t2}, v{vR2}, v{vR2+1}')
a(f'v_cvt_pk_bf16_f32 v{t3}, v{vR2+2}, v{vR2+3}')
a(f'v_lshlrev_b32 v{vR2}, 16, v{t2}')
a(f'v_and_b32 v{vR2+1}, 0xffff0000, v{t2}')
a(f'v_lshlrev_b32 v{vR2+2}, 16, v{t3}')
a(f'v_and_b32 v{vR2+3}, 0xffff0000, v{t3}')
a(f'v_add_f32 v{vR2}, v{vR2}, v{vR2+2}')
a(f'v_add_f32 v{vR2+1}, v{vR2+1}, v{vR2+3}')
a(f'v_cvt_pk_bf16_f32 v{t2}, v{vR2}, v{vR2+1}')
a(f's_mul_i32 s3, s{S_B}, 1152')
a(f's_lshl_b32 s4, s{S_SP}, 7')
a('s_add_u32 s3, s3, s4')
srd(SA, 28, None, 2304)
a(f'v_lshlrev_b32 v{t1}, 2, v{V_LANE}')
a(f'buffer_store_dword v{t2}, v{t1}, s[{SA}:{SA+3}], s3 offen')
if DBGT:
    a('s_memrealtime s[66:67]')
    a('s_waitcnt lgkmcnt(0)')
    a('s_sub_u32 s66, s66, s72')
    a(f's_lshl_b32 s3, s{S_B}, 3')
    a(f's_add_u32 s3, s3, s{S_SP}')
    a('s_and_b32 s3, s3, 3')
    a('s_lshl_b32 s3, s3, 2')
    a('s_add_u32 s3, s3, 16')
    a('v_mov_b32 v254, s66')
    a('v_mov_b32 v255, s3')
    a('s_mov_b64 exec, 1')
    a('global_store_dword v255, v254, s[30:31]')
a.label('L_end')
a('s_endpgm')

nv = max(stream_v, helper_v, va.n)
assert nv <= 256, nv
tail = f'''.section .rodata,"a"
.p2align 6
.amdhsa_kernel {NAME}
  .amdhsa_next_free_vgpr 256
  .amdhsa_next_free_sgpr 80
  .amdhsa_accum_offset 256
  .amdhsa_group_segment_fixed_size 0
  .amdhsa_kernarg_size 104
  .amdhsa_user_sgpr_count 2
  .amdhsa_user_sgpr_kernarg_segment_ptr 1
  .amdhsa_system_sgpr_workgroup_id_x 1
.end_amdhsa_kernel
'''
out = sys.argv[1] if len(sys.argv) > 1 else 'gated_mix__gqa_block_cached__geglu_ffn__decode.s'
open(out, 'w').write(print_top + a.text() + tail)
print('written', out, 'lds', LDS_BYTES, file=sys.stderr)
```

```python
import struct, sys

NAME = "gated_mix__gqa_block_cached__geglu_ffn__decode_kernel"

def f32(x): return struct.unpack('<I', struct.pack('<f', x))[0]

class Asm:
    def __init__(s): s.o = []; s.lab = 0
    def __call__(s, txt):
        for line in txt.strip('\n').split('\n'):
            s.o.append('    ' + line.strip())
    def label(s, name): s.o.append(name + ':')
    def newlab(s, p='L'): s.lab += 1; return f'{p}_{s.lab}'
    def text(s): return '\n'.join(s.o) + '\n'

class VAlloc:
    def __init__(s, start=0): s.n = start; s.hi = start
    def __call__(s, cnt=1, align=1):
        s.n = (s.n + align - 1)//align*align
        r = s.n; s.n += cnt; s.hi = max(s.hi, s.n); return r

def vr(b, n=1): return f'v{b}' if n == 1 else f'v[{b}:{b+n-1}]'

import os
E = lambda k, d: int(os.environ.get(k, d))
NU = 1
DEP = E('DEP', 6)
QDEP = E('QDEP', 44)
PDEP = E('PDEP', 6)
LOOK = E('LOOK', 5)
NSLOT = LOOK + 1
TB = 4096*NU
NT = 2048//NU
OPS = 1 + 8*NU
LTB = 12 if NU == 1 else 13
PRE_B1 = E('PRE_B1', 99)
PRE_B1 = min(PRE_B1, LOOK)
HPRIO = E('HPRIO', 3)
NSTATIC = E('NSTATIC', 52)
LIVE = NSTATIC - LOOK - 1
CWIT = E('CWIT', 20)
AHEAD = E('AHEAD', 3)
DYN = E('DYN', 0)
PRELATE = E('PRELATE', 0)
F1LATE = E('F1LATE', 1)
HD = E('HD', 0)
QROT = E('QROT', 0)
BATCH = E('BATCH', 2)
NOCOMP = E('NOCOMP', 0)
NOHELP = E('NOHELP', 0)
COOP = E('COOP', 1)
QSLEEP = E('QSLEEP', 4)
MAP = E('MAP', 3)
PFNT = E('PFNT', 1)
NOQ = E('NOQ', 0)
NOF1 = E('NOF1', 0)
NOPF = E('NOPF', 0)
CWAIT_AT = E('CWAIT_AT', 12)
WNT = E('WNT', 1)
PSLEEP = E('PSLEEP', 32)
QR = 32
EMPTY = 0xFFFFFFFF
ENDT = 0x40000000
SPRIO = E('SPRIO', 0)
NIT = 32
MIMIC = True

L_RING = 0
L_QP = 4*NSLOT*TB
L_QB = L_QP + 4096
L_OW = L_QB + 2048
L_ML = L_OW + 4096
L_F1R = L_ML + 64
L_HB = L_F1R + 8192
L_YW = L_HB + 1024
L_CNT = L_YW + 4096
LDS_BYTES = L_CNT + 64

WS_OP = 0
WS_YP = 256*2048
WS_FP = WS_YP + 256*1024
NF1 = 216
WS_QP = (2 << 20) + 65536
WS_FLAG = (2 << 20) + 16384
WS_CNT = 2 << 20

SENT = 0xFFFFFFFF
import os
TIMING = int(os.environ.get('TIMING', '0'))
DBGT = int(os.environ.get('DBGT', '0'))
WS_TS = 3 << 20
def stamp_start(idx, wavesel):
    if not TIMING: return
    l = a.newlab('L_ts')
    a(f's_cmp_lg_u32 s{S_WAVE}, {wavesel}')
    a(f's_cbranch_scc1 {l}')
    a(f's_lshl_b32 s67, s2, 7')
    a(f's_add_u32 s67, s67, {WS_TS + idx*4}')
    a('s_add_u32 s68, s32, s67')
    a('s_addc_u32 s69, s33, 0')
    a('v_mov_b32 v254, s72')
    a('v_mov_b32 v255, 0')
    a('global_store_dword v255, v254, s[68:69]')
    a.label(l)
def stamp(idx, wavesel):
    if not TIMING: return
    l = a.newlab('L_ts')
    a(f's_cmp_lg_u32 s{S_WAVE}, {wavesel}')
    a(f's_cbranch_scc1 {l}')
    a('s_memrealtime s[66:67]')
    a('s_waitcnt lgkmcnt(0)')
    a(f's_lshl_b32 s67, s2, 7')
    a(f's_add_u32 s67, s67, {WS_TS + idx*4}')
    a('s_add_u32 s68, s32, s67')
    a('s_addc_u32 s69, s33, 0')
    a('v_mov_b32 v254, s66')
    a('v_mov_b32 v255, 0')
    a('global_store_dword v255, v254, s[68:69]')
    a.label(l)

SCALE = 128 ** -0.5
LOG2E = 1.4426950408889634

a = Asm()

def srd(dst, plo, off_sgpr_lo, size, off_hi=None):
    if off_sgpr_lo is None:
        a(f's_mov_b32 s{dst}, s{plo}')
        a(f's_and_b32 s{dst+1}, s{plo+1}, 0xffff')
    else:
        a(f's_add_u32 s{dst}, s{plo}, {off_sgpr_lo}')
        a(f's_addc_u32 s{dst+1}, s{plo+1}, 0')
        a(f's_and_b32 s{dst+1}, s{dst+1}, 0xffff')
    a(f's_mov_b32 s{dst+2}, {size}')
    a(f's_mov_b32 s{dst+3}, 0x00020000')

def make_selectors(vlane, selLo, selHi, t0, t1):
    a(f'v_and_b32 v{t0}, 1, v{vlane}')
    a(f'v_cmp_eq_u32 vcc, 1, v{t0}')
    a(f'v_mov_b32 v{t0}, 0x0c0c0100')
    a(f'v_mov_b32 v{t1}, 0x01000c0c')
    a('s_nop 1')
    a(f'v_cndmask_b32 v{t0}, v{t0}, v{t1}, vcc')
    a(f'v_mov_b32 v{t1}, 0x0c0c0302')
    a(f'v_mov_b32 v{selHi}, 0x03020c0c')
    a(f'v_cndmask_b32 v{t1}, v{t1}, v{selHi}, vcc')
    a(f'v_bfe_u32 v{selHi+3}, v{vlane}, 1, 2')
    a(f'v_mov_b32 v{selLo+3}, 0x0c0c0c0c')
    for w in range(3):
        a(f'v_cmp_eq_u32 vcc, {w}, v{selHi+3}')
        a('s_nop 1')
        a(f'v_cndmask_b32 v{selLo+w}, v{selLo+3}, v{t0}, vcc')
        a(f'v_cndmask_b32 v{selHi+w}, v{selLo+3}, v{t1}, vcc')
    a(f'v_cmp_eq_u32 vcc, 3, v{selHi+3}')
    a('s_nop 1')
    a(f'v_cndmask_b32 v{selHi+3}, v{selLo+3}, v{t1}, vcc')
    a(f'v_cndmask_b32 v{selLo+3}, v{selLo+3}, v{t0}, vcc')

def aop(dst, src, sel):
    for w in range(4):
        a(f'v_perm_b32 v{dst+w}, v{src}, v{src}, v{sel+w}')

hdr = open('gated_mix__gqa_block_cached__geglu_ffn__decode.s.ref').read().split('\n')
top = []
for line in hdr:
    if line.startswith('; @launch'):
        top.append(f'; @launch grid=(256,1,1) block=(512,1,1) lds={LDS_BYTES}')
    elif line.startswith(';'):
        top.append(line)
    else:
        break
print_top = '\n'.join(top) + '\n'

a.o.append('.amdgcn_target "amdgcn-amd-amdhsa--gfx950"')
a.o.append('.text')
a.o.append(f'.globl {NAME}')
a.o.append('.p2align 8')
a.o.append(f'.type {NAME},@function')
a.label(NAME)

S_WAVE, S_HKV, S_B, S_SP, S_W = 34, 35, 36, 37, 38
a('s_cmp_ge_u32 s2, 256')
a('s_cbranch_scc1 L_end')
if TIMING or DBGT: a('s_memrealtime s[72:73]')
a('s_load_dwordx16 s[8:23], s[0:1], 0')
a('s_load_dwordx8 s[24:31], s[0:1], 64')
a('s_load_dwordx2 s[32:33], s[0:1], 96')
V_LANE = 1; V_G = 2; V_C = 3
a('v_lshrrev_b32 v4, 6, v0')
a(f'v_and_b32 v{V_LANE}, 63, v0')
a(f'v_readfirstlane_b32 s{S_WAVE}, v4')
a(f'v_lshrrev_b32 v{V_G}, 4, v{V_LANE}')
a(f'v_and_b32 v{V_C}, 15, v{V_LANE}')
if MAP == 0:
    a('s_and_b32 s3, s2, 7')
    a('s_lshr_b32 s4, s2, 3')
    a('s_lshr_b32 s5, s3, 1')
    a('s_lshl_b32 s5, s5, 2')
    a('s_and_b32 s6, s4, 3')
    a(f's_add_u32 s{S_HKV}, s5, s6')
    a('s_lshr_b32 s5, s4, 2')
    a(f's_and_b32 s{S_B}, s5, 1')
    a('s_lshr_b32 s5, s4, 3')
    a('s_lshl_b32 s5, s5, 1')
    a('s_and_b32 s6, s3, 1')
    a(f's_add_u32 s{S_SP}, s5, s6')
elif MAP == 3:
    a('s_and_b32 s3, s2, 7')
    a('s_lshr_b32 s4, s2, 3')
    a('s_lshl_b32 s3, s3, 1')
    a('s_and_b32 s5, s4, 1')
    a(f's_add_u32 s{S_HKV}, s3, s5')
    a('s_lshr_b32 s5, s4, 1')
    a(f's_and_b32 s{S_B}, s5, 1')
    a(f's_lshr_b32 s{S_SP}, s4, 2')
elif MAP == 1:
    a(f's_and_b32 s{S_SP}, s2, 7')
    a('s_lshr_b32 s4, s2, 3')
    a(f's_and_b32 s{S_HKV}, s4, 15')
    a(f's_lshr_b32 s{S_B}, s4, 4')
else:
    a('s_and_b32 s3, s2, 7')
    a('s_lshr_b32 s4, s2, 3')
    a('s_bfe_u32 s5, s3, 0x10001')
    a('s_lshl_b32 s5, s5, 3')
    a('s_and_b32 s6, s4, 7')
    a(f's_add_u32 s{S_HKV}, s5, s6')
    a('s_lshr_b32 s5, s4, 3')
    a(f's_and_b32 s{S_B}, s5, 1')
    a('s_lshr_b32 s5, s4, 4')
    a('s_lshl_b32 s5, s5, 2')
    a('s_lshr_b32 s6, s3, 2')
    a('s_lshl_b32 s6, s6, 1')
    a('s_add_u32 s5, s5, s6')
    a('s_and_b32 s6, s3, 1')
    a(f's_add_u32 s{S_SP}, s5, s6')
a(f's_and_b32 s{S_W}, s{S_WAVE}, 3')
a(f's_cmp_ge_u32 s{S_WAVE}, 4')
a('s_cbranch_scc1 L_helper')

va = VAlloc(4)
vKoff = va(4); vVoff = va(1); vKrd = va(4)
selLo = va(4); selHi = va(4)
vM = va(1); vMc = va(1); vL = va(1)
t0 = va(1); t1 = va(1); t2 = va(1); t3 = va(1)
acc = va(4, 4)
vQ = va(16, 4)
vKf = va(16, 4)
vS = va(4, 4)
vPk = va(4, 2)
vA = va(16, 4)
vV = va(16*NSLOT, 4)
print('streaming vgprs', va.n, file=sys.stderr)
stream_v = va.n

SK, SV = 40, 44
S_T0, S_RING, S_IT, S_C = 48, 50, 51, 52
S_MSAME = 54
NTILE = 64
if SPRIO: a(f's_setprio {SPRIO}')
for j in range(4):
    a(f'v_add_u32 v{t0}, {4*j}, v{V_G}')
    a(f'v_xor_b32 v{t0}, v{t0}, v{V_C}')
    a(f'v_lshlrev_b32 v{t0}, 4, v{t0}')
    a(f'v_lshl_add_u32 v{vKoff+j}, v{V_G}, 8, v{t0}')
a(f'v_lshlrev_b32 v{t0}, 4, v{V_C}')
a(f'v_lshl_add_u32 v{vVoff}, v{V_G}, 10, v{t0}')
a(f's_mul_i32 s{S_RING}, s{S_W}, {NSLOT*TB}')
for m in range(4):
    a(f'v_add_u32 v{t0}, {4*m}, v{V_G}')
    a(f'v_xor_b32 v{t0}, v{t0}, v{V_C}')
    a(f'v_lshlrev_b32 v{t0}, 4, v{t0}')
    a(f'v_lshl_add_u32 v{t0}, v{V_C}, 8, v{t0}')
    a(f'v_add_u32 v{vKrd+m}, s{S_RING}, v{t0}')
SCN = 76
vZero = va(1); vCl = va(2)
stream_v = va.n
S_T1 = 49
if DYN:
    a(f'v_mov_b32 v{vZero}, 0')
    a(f's_lshl_b32 s3, s{S_B}, 4')
    a(f's_add_u32 s3, s3, s{S_HKV}')
    a('s_lshl_b32 s4, s3, 8')
    a(f's_add_u32 s4, s4, {WS_CNT}')
    a('s_lshl_b32 s3, s3, 23')
    a(f's_mul_i32 s5, s{S_SP}, {4*NSTATIC}')
    a(f's_add_u32 s5, s5, s{S_W}')
    a(f's_lshl_b32 s{S_T0}, s5, 12')
    a(f's_mov_b32 s{S_T1}, s{S_T0}')
    a('s_waitcnt lgkmcnt(0)')
    srd(SK, 10, 's3', 1 << 23)
    srd(SV, 12, 's3', 1 << 23)
    srd(SCN, 32, 's4', 0)
else:
    a(f's_lshl_b32 s3, s{S_B}, 4')
    a(f's_add_u32 s3, s3, s{S_HKV}')
    a('s_lshl_b32 s3, s3, 3')
    a(f's_add_u32 s3, s3, s{S_SP}')
    a('s_lshl_b32 s3, s3, 20')
    a(f's_lshl_b32 s{S_T0}, s{S_W}, 12')
    a('s_waitcnt lgkmcnt(0)')
    srd(SK, 10, 's3', 1 << 20)
    srd(SV, 12, 's3', 1 << 20)
S_TL = 56
def claim():
    a(f's_waitcnt vmcnt({DEP-1})')
    a('s_mov_b64 exec, 1')
    a(f'v_mov_b32 v{vCl}, 1')
    a(f'buffer_atomic_add v{vCl}, v{vZero}, s[{SCN}:{SCN+3}], 0 offen sc0')
    a('s_mov_b64 exec, -1')

nissued = [0]
def issue_load(slot, k, dep=None):
    a(f's_waitcnt vmcnt({(dep or DEP)-1})')
    if k < 4:
        if k == 0:
            if DYN: a(f's_mov_b32 s{S_TL+slot}, s{S_T0}')
            a(f's_add_u32 m0, s{S_RING}, {slot*TB}')
            a('s_nop 0')
        a(f'buffer_load_dwordx4 v{vKoff+k}, s[{SK}:{SK+3}], s{S_T0} offen offset:{k*1024} nt lds')
    else:
        r = k-4
        b_ = vV + slot*16 + r*4
        a(f'buffer_load_dwordx4 {vr(b_,4)}, v{vVoff}, s[{SV}:{SV+3}], s{S_T0} offen offset:{r*256} nt')
        if k == 7 and not DYN: a(f's_add_u32 s{S_T0}, s{S_T0}, {4*TB}')

if PRELATE: a('s_barrier')
for t in range(LOOK):
    if DYN:
        claim()
    for k in range(8): issue_load(t, k, PDEP)
    if DYN:
        a(f's_add_u32 s{S_T1}, s{S_T1}, {4*TB}')
        a(f's_mov_b32 s{S_T0}, s{S_T1}')
make_selectors(V_LANE, selLo, selHi, t0, t1)
a(f'v_bfe_u32 v{t0}, v{V_LANE}, 3, 1')
a(f'v_lshrrev_b32 v{t1}, 5, v{V_LANE}')
a(f'v_cmp_eq_u32 s[{S_MSAME}:{S_MSAME+1}], v{t0}, v{t1}')
a(f'v_mov_b32 v{vM}, 0xff800000')
a(f'v_mov_b32 v{vMc}, 0xff800000')
a(f'v_mov_b32 v{vL}, 0')
for r in range(4): a(f'v_mov_b32 v{acc+r}, 0')
if MIMIC:
    a(f's_mov_b32 s{S_C}, {f32(LOG2E):#x}')
    a(f's_mov_b32 s{S_C+1}, {f32(SCALE):#x}')
else:
    a(f's_mov_b32 s{S_C}, {f32(SCALE*LOG2E):#x}')
stamp(0, 0)
stamp_start(12, 0)
if not PRELATE: a('s_barrier')
stamp(1, 0)
if DBGT:
    l = a.newlab('L_dbg')
    a('s_cmp_ge_u32 s2, 4')
    a(f's_cbranch_scc1 {l}')
    a(f's_cmp_lg_u32 s{S_WAVE}, 0')
    a(f's_cbranch_scc1 {l}')
    a('s_memrealtime s[66:67]')
    a('s_waitcnt lgkmcnt(0)')
    a('s_sub_u32 s66, s66, s72')
    a('s_lshl_b32 s3, s2, 3')
    a('s_add_u32 s3, s3, 32')
    a('v_mov_b32 v254, s66')
    a('v_mov_b32 v255, s3')
    a('global_store_dword v255, v254, s[30:31]')
    a.label(l)
if COOP:
    a(f'v_bfe_u32 v{t1}, v{V_LANE}, 3, 1')
    a(f'v_lshlrev_b32 v{t1}, 8, v{t1}')
    a(f'v_lshl_add_u32 v{t1}, v{V_G}, 4, v{t1}')
    a(f'v_add_u32 v{t1}, {L_QB}, v{t1}')
    for m in range(4):
        a(f'ds_read_b128 {vr(vQ+4*m,4)}, v{t1} offset:{m*64}')
    a('s_waitcnt lgkmcnt(0)')
else:
    a(f'v_lshlrev_b32 v{t0}, 4, v{V_LANE}')
    a(f'v_add_u32 v{t0}, {L_QP}, v{t0}')
    for wv in range(4):
        a(f'ds_read_b128 {vr(vA+4*wv,4)}, v{t0} offset:{wv*1024}')
    a('s_waitcnt lgkmcnt(0)')
    for r in range(4):
        a(f'v_add_f32 v{vA+r}, v{vA+r}, v{vA+4+r}')
        a(f'v_add_f32 v{vA+8+r}, v{vA+8+r}, v{vA+12+r}')
    for r in range(4):
        a(f'v_add_f32 v{vA+r}, v{vA+r}, v{vA+8+r}')
    a(f'v_cvt_pk_bf16_f32 v{vPk}, v{vA}, v{vA+1}')
    a(f'v_cvt_pk_bf16_f32 v{vPk+1}, v{vA+2}, v{vA+3}')
    a(f's_lshl_b32 s3, s{S_W}, 9')
    a(f's_add_u32 s3, s3, {L_QB}')
    a(f'v_lshl_add_u32 v{t0}, v{V_LANE}, 3, s3')
    a(f'ds_write_b64 v{t0}, {vr(vPk,2)}')
    a(f'v_bfe_u32 v{t1}, v{V_LANE}, 3, 1')
    a(f'v_lshlrev_b32 v{t1}, 8, v{t1}')
    a(f'v_lshl_add_u32 v{t1}, v{V_G}, 4, v{t1}')
    a(f'v_add_u32 v{t1}, s3, v{t1}')
    a('s_waitcnt lgkmcnt(0)')
    for m in range(4):
        a(f'ds_read_b128 {vr(vQ+4*m,4)}, v{t1} offset:{m*64}')
    a('s_waitcnt lgkmcnt(0)')
a(f's_mov_b32 s{S_IT}, 0')
if TIMING: a('s_mov_b32 s74, 0'); a('s_mov_b32 s75, 0')
assert 8*LOOK - DEP >= 7 + LOOK
a.label('L_sloop')
if TIMING:
    l = a.newlab('L_tl')
    a(f's_cmp_lg_u32 s{S_WAVE}, 0')
    a(f's_cbranch_scc1 {l}')
    a('s_memrealtime s[66:67]')
    a('s_waitcnt lgkmcnt(0)')
    a(f's_lshl_b32 s67, s2, 7')
    a('s_lshl_b32 s68, s75, 2')
    a('s_add_u32 s67, s67, s68')
    a(f's_add_u32 s67, s67, {WS_TS + 64}')
    a('s_add_u32 s68, s32, s67')
    a('s_addc_u32 s69, s33, 0')
    a('v_mov_b32 v254, s66')
    a('v_mov_b32 v255, 0')
    a('global_store_dword v255, v254, s[68:69]')
    a('s_add_u32 s75, s75, 1')
    a.label(l)
for slot in range(NSLOT):
    nslot = (slot+LOOK) % NSLOT
    if DYN:
        a(f's_cmp_ge_u32 s{S_TL+slot}, {1<<23}')
        a('s_cbranch_scc1 L_send')
        if slot == LIVE % NSLOT:
            a(f's_cmp_eq_u32 s{S_IT}, {LIVE}')
            a('s_cbranch_scc1 L_golive')
            a.label('L_golive_back')
    else:
        a(f's_cmp_ge_u32 s{S_IT}, {NTILE}')
        a('s_cbranch_scc1 L_send')
    if slot == CWIT % NSLOT:
        a(f's_cmp_eq_u32 s{S_IT}, {CWIT}')
        a('s_cbranch_scc1 L_prog')
        a.label('L_prog_back')
    if DYN:
        a(f's_waitcnt vmcnt({DEP-1})')
        a(f'v_readfirstlane_b32 s3, v{vCl}')
        a(f's_add_u32 s3, s3, {32*NSTATIC}')
        a('s_lshl_b32 s4, s3, 12')
        a('s_cmp_lt_u32 s3, 2048')
        a(f's_cselect_b32 s4, s4, {ENDT:#x}')
        a(f's_cmp_lt_u32 s{S_IT}, {NSTATIC-LOOK}')
        a(f's_cselect_b32 s{S_T0}, s{S_T1}, s4')
        a(f's_add_u32 s{S_T1}, s{S_T1}, {4*TB}')
        claim()
    a(f's_add_u32 s{S_IT}, s{S_IT}, 1')
    issue_load(nslot, 0)
    for m in range(4):
        a(f'ds_read_b128 {vr(vKf+m*4,4)}, v{vKrd+m} offset:{slot*TB}')
    issue_load(nslot, 1)
    for m in range(4):
        a(f's_waitcnt lgkmcnt({3-m})')
        c = '0' if m == 0 else vr(vS,4)
        a(f'v_mfma_f32_16x16x32_bf16 {vr(vS,4)}, {vr(vKf+m*4,4)}, {vr(vQ+4*m,4)}, {c}')
    issue_load(nslot, 2)
    if NOCOMP:
        for k in range(3, 8): issue_load(nslot, k)
        continue
    a('s_nop 7')
    if MIMIC:
        for j in range(2):
            a(f'v_cvt_pk_bf16_f32 v{vPk+j}, v{vS+2*j}, v{vS+2*j+1}')
        for j in range(2):
            a(f'v_lshlrev_b32 v{vS+2*j}, 16, v{vPk+j}')
            a(f'v_and_b32 v{vS+2*j+1}, 0xffff0000, v{vPk+j}')
        for i in range(4):
            a(f'v_mul_f32 v{vS+i}, s{S_C+1}, v{vS+i}')
        for j in range(2):
            a(f'v_cvt_pk_bf16_f32 v{vPk+j}, v{vS+2*j}, v{vS+2*j+1}')
        for j in range(2):
            a(f'v_lshlrev_b32 v{vS+2*j}, 16, v{vPk+j}')
            a(f'v_and_b32 v{vS+2*j+1}, 0xffff0000, v{vPk+j}')
    a(f'v_max3_f32 v{t0}, v{vS}, v{vS+1}, v{vS+2}')
    a(f'v_max_f32 v{t0}, v{t0}, v{vS+3}')
    a(f'v_cmp_gt_f32 vcc, v{t0}, v{vM}')
    rare = f'L_rare_{slot}'; back = f'L_back_{slot}'
    a(f's_cbranch_vccnz {rare}')
    a.label(back)
    issue_load(nslot, 3)
    for i in range(4):
        a(f'v_fma_f32 v{vS+i}, v{vS+i}, s{S_C}, -v{vMc}')
    for i in range(4):
        a(f'v_exp_f32 v{vS+i}, v{vS+i}')
    issue_load(nslot, 4)
    for j in range(2):
        a(f'v_cvt_pk_bf16_f32 v{vPk+j}, v{vS+2*j}, v{vS+2*j+1}')
    a(f'v_add_f32 v{t0}, v{vS}, v{vS+1}')
    a(f'v_add_f32 v{t1}, v{vS+2}, v{vS+3}')
    a(f'v_add_f32 v{t0}, v{t0}, v{t1}')
    a(f'v_add_f32 v{vL}, v{vL}, v{t0}')
    issue_load(nslot, 5)
    for i in range(2):
        aop(vA+4*i, vPk+i//2, selLo if i % 2 == 0 else selHi)
    issue_load(nslot, 6)
    for i in range(2, 4):
        aop(vA+4*i, vPk+i//2, selLo if i % 2 == 0 else selHi)
    issue_load(nslot, 7)
    for i in range(4):
        b_ = vV + slot*16 + i*4
        a(f'v_mfma_f32_16x16x32_bf16 {vr(acc,4)}, {vr(vA+4*i,4)}, {vr(b_,4)}, {vr(acc,4)}')
a('s_branch L_sloop')
if DYN:
    a.label('L_golive')
    a(f's_lshl_b32 s3, s{S_W}, 2')
    a(f's_add_u32 s3, s3, {L_CNT+32}')
    a(f'v_mov_b32 v{t0}, s3')
    a.label('L_golive_spin')
    a(f'ds_read_b32 v{t1}, v{t0}')
    a('s_waitcnt lgkmcnt(0)')
    a(f'v_readfirstlane_b32 s3, v{t1}')
    a('s_cmp_eq_u32 s3, 0')
    a('s_cbranch_scc1 L_golive_spin')
    a(f's_mov_b32 s{SCN+2}, 4')
    a('s_branch L_golive_back')
a.label('L_prog')
a(f's_lshl_b32 s3, s{S_W}, 2')
a(f's_add_u32 s3, s3, {L_CNT+16}')
a(f'v_mov_b32 v{t0}, s3')
a(f'v_mov_b32 v{t1}, 1')
a(f'ds_write_b32 v{t0}, v{t1}')
a('s_branch L_prog_back')
a.label('L_send')
stamp(2, 0)
if DBGT:
    l = a.newlab('L_dbg')
    a('s_cmp_ge_u32 s2, 4')
    a(f's_cbranch_scc1 {l}')
    a(f's_cmp_lg_u32 s{S_WAVE}, 0')
    a(f's_cbranch_scc1 {l}')
    a('s_memrealtime s[66:67]')
    a('s_waitcnt lgkmcnt(0)')
    a('s_sub_u32 s66, s66, s72')
    a('s_lshl_b32 s3, s2, 3')
    a('s_add_u32 s3, s3, 36')
    a('v_mov_b32 v254, s66')
    a('v_mov_b32 v255, s3')
    a('global_store_dword v255, v254, s[30:31]')
    a.label(l)

a(f'v_mov_b32 v{t0}, v{vL}')
a('s_nop 1')
a(f'v_permlane16_swap_b32 v{vL}, v{t0}')
a('s_nop 1')
a(f'v_add_f32 v{vL}, v{vL}, v{t0}')
a(f'v_mov_b32 v{t0}, v{vL}')
a('s_nop 1')
a(f'v_permlane32_swap_b32 v{vL}, v{t0}')
a('s_nop 1')
a(f'v_add_f32 v{vPk+1}, v{vL}, v{t0}')
a(f'v_mov_b32 v{vPk}, v{vM}')
a(f'v_lshrrev_b32 v{t0}, 1, v{V_G}')
a(f'v_lshlrev_b32 v{t0}, 9, v{t0}')
a(f'v_lshl_add_u32 v{t0}, v{V_C}, 5, v{t0}')
a(f'v_and_b32 v{t1}, 1, v{V_G}')
a(f'v_lshl_add_u32 v{t0}, v{t1}, 4, v{t0}')
a(f's_lshl_b32 s3, s{S_W}, 10')
a(f's_add_u32 s3, s3, {L_OW}')
a(f'v_add_u32 v{t0}, s3, v{t0}')
a('s_nop 7')
a(f'ds_write_b128 v{t0}, {vr(acc,4)}')
a(f'v_bfe_u32 v{t1}, v{V_LANE}, 3, 1')
a(f'v_lshlrev_b32 v{t1}, 3, v{t1}')
a(f's_lshl_b32 s3, s{S_W}, 4')
a(f's_add_u32 s3, s3, {L_ML}')
a(f'v_add_u32 v{t1}, s3, v{t1}')
a(f'ds_write_b64 v{t1}, {vr(vPk,2)}')
a('s_waitcnt lgkmcnt(0)')
a('s_barrier')
a('s_endpgm')
for slot in range(NSLOT if not NOCOMP else 0):
    a.label(f'L_rare_{slot}')
    a(f'v_max_f32 v{t0}, v{t0}, v{vM}')
    a(f'v_mov_b32 v{t1}, v{t0}')
    a('s_nop 1')
    a(f'v_permlane16_swap_b32 v{t0}, v{t1}')
    a('s_nop 1')
    a(f'v_max_f32 v{t0}, v{t0}, v{t1}')
    a(f'v_mov_b32 v{t1}, v{t0}')
    a('s_nop 1')
    a(f'v_permlane32_swap_b32 v{t0}, v{t1}')
    a('s_nop 1')
    a(f'v_max_f32 v{t0}, v{t0}, v{t1}')
    a(f'v_sub_f32 v{t1}, v{vM}, v{t0}')
    a(f'v_mul_f32 v{t1}, s{S_C}, v{t1}')
    a(f'v_exp_f32 v{t1}, v{t1}')
    a(f'v_mov_b32 v{vM}, v{t0}')
    a(f'v_mul_f32 v{vMc}, s{S_C}, v{t0}')
    a(f'v_mul_f32 v{vL}, v{vL}, v{t1}')
    a('s_nop 1')
    a(f'v_mov_b32_dpp v{t2}, v{t1} row_ror:8 row_mask:0xf bank_mask:0xf')
    a('s_nop 1')
    a(f'v_cndmask_b32 v{t2}, v{t2}, v{t1}, s[{S_MSAME}:{S_MSAME+1}]')
    for r in range(4):
        a(f'v_mul_f32 v{acc+r}, v{acc+r}, v{t2}')
    a('s_nop 1')
    a(f's_branch L_back_{slot}')

a.label('L_helper')
if HPRIO: a(f's_setprio {HPRIO}')
va = VAlloc(4)
selLo = va(4); selHi = va(4)
t0 = va(1); t1 = va(1); t2 = va(1); t3 = va(1); t4 = va(1); t5 = va(1)
vOff = va(1); vOff2 = va(1)
accQ = va(8, 4)
vA = va(8, 4)
vX = va(24, 4)
QD = QDEP
vW = va(176, 4)
print('helper vgprs', va.n, file=sys.stderr)
helper_v = va.n
SA, SB_, SC_, SD = 40, 44, 48, 52
S_O = 56; S_T = 57; S_G = 58; S_OMG = 59; S_C = 60
a(f'v_mov_b32 v{t0}, {L_CNT}')
a(f'v_mov_b32 v{t1}, 0')
a(f'v_lshl_add_u32 v{t0}, v{V_C}, 2, v{t0}')
a(f'ds_write_b32 v{t0}, v{t1}')
if NOHELP:
    a(f'v_mov_b32 v{t0}, {L_CNT+32}')
    a(f'v_mov_b32 v{t1}, 1')
    a(f'v_lshl_add_u32 v{t0}, v{V_G}, 2, v{t0}')
    a('s_waitcnt lgkmcnt(0)')
    a(f'ds_write_b32 v{t0}, v{t1}')
    a('s_waitcnt lgkmcnt(0)')
    a('s_barrier')
    a('s_branch L_claimstart')
S_KS, S_CB = 63, 64
vF = vW
vXF = vX + 12
vNon = vX + 16
def f1_issue():
    a(f's_mul_i32 s3, s2, 1821')
    a(f's_lshr_b32 s{S_KS}, s3, 16')
    a(f's_mul_i32 s3, s{S_KS}, 36')
    a(f's_sub_u32 s{S_CB}, s2, s3')
    a(f's_mul_i32 s3, s{S_KS}, 96')
    a(f's_mul_i32 s4, s{S_W}, 24')
    a('s_add_u32 s3, s3, s4')
    a(f'v_mul_u32_u24 v{t1}, 6, v{V_G}')
    a(f'v_add_u32 v{t1}, s3, v{t1}')
    a(f'v_mul_u32_u24 v{t4}, 9216, v{t1}')
    a(f'v_lshl_add_u32 v{t4}, v{V_C}, 4, v{t4}')
    a(f'v_bfe_u32 v{t2}, v{V_LANE}, 3, 1')
    a(f'v_mul_u32_u24 v{t2}, 1152, v{t2}')
    a(f'v_lshl_add_u32 v{t5}, v{t1}, 1, v{t2}')
    a(f's_lshl_b32 s3, s{S_CB}, 8')
    a(f's_sub_u32 s4, {576*9216}, s3')
    a(f's_cmp_ge_u32 s2, {NF1}')
    a('s_cselect_b32 s4, 0, s4')
    a('s_cselect_b32 s3, 0, s3')
    a('s_cselect_b32 s5, 0, 2304')
    if NOF1: a('s_mov_b32 s4, 0')
    srd(SA, 8, None, 's5')
    srd(SB_, 20, 's3', 's4')
    srd(SC_, 22, 's3', 's4')
    a(f'buffer_load_dwordx3 {vr(vXF,3)}, v{t5}, s[{SA}:{SA+3}], 0 offen')
    a(f's_mov_b32 s{S_O}, 0')
    for t in range(6):
        a(f'buffer_load_dwordx4 {vr(vF+8*t,4)}, v{t4}, s[{SB_}:{SB_+3}], s{S_O} offen nt')
        a(f'buffer_load_dwordx4 {vr(vF+8*t+4,4)}, v{t4}, s[{SC_}:{SC_+3}], s{S_O} offen nt')
        a(f's_add_u32 s{S_O}, s{S_O}, 9216')
if COOP:
    vWq = vW + 48
    a('s_memrealtime s[70:71]')
    a('s_waitcnt lgkmcnt(0)')
    srd(SD, 32, None, 4 << 20)
    a(f's_cmp_lg_u32 s{S_W}, 0')
    a('s_cbranch_scc1 L_hq_other')
    S_HP = 78; S_CI = 79
    a(f's_lshl_b32 s{S_CI}, s{S_B}, 3')
    a(f's_add_u32 s{S_CI}, s{S_CI}, s{S_SP}')
    a(f's_bfe_u32 s{S_HP}, s2, 0x40003')
    a('s_and_b32 s6, s2, 7')
    a('s_lshr_b32 s3, s2, 7')
    a('s_lshl_b32 s3, s3, 3')
    a('s_add_u32 s6, s6, s3')
    a('s_mul_i32 s3, s6, 72')
    a(f'v_bfe_u32 v{t2}, v{V_LANE}, 3, 1')
    a(f'v_mul_u32_u24 v{t2}, 1152, v{t2}')
    a(f'v_lshl_add_u32 v{t2}, v{V_G}, 1, v{t2}')
    a(f'v_add_u32 v{vOff2}, s3, v{t2}')
    a(f'v_lshlrev_b32 v{t2}, 13, v{V_G}')
    a(f'v_lshl_add_u32 v{vOff}, v{V_C}, 4, v{t2}')
    a(f's_lshl_b32 s4, s{S_HP}, 9')
    a(f's_sub_u32 s5, {576*8192}, s4')
    srd(SA, 8, None, 2304)
    srd(SB_, 14, 's4', 's5')
    if NOQ: a(f's_mov_b32 s{SB_+2}, 0')
    a(f's_mul_i32 s{S_O}, s6, {36*8192}')
    for t in range(9):
        a(f'buffer_load_dwordx4 {vr(vWq+8*t,4)}, v{vOff}, s[{SB_}:{SB_+3}], s{S_O} offen nt')
        a(f'buffer_load_dwordx4 {vr(vWq+8*t+4,4)}, v{vOff}, s[{SB_}:{SB_+3}], s{S_O} offen offset:256 nt')
        a(f's_add_u32 s{S_O}, s{S_O}, {4*8192}')
    for t in range(9):
        a(f'buffer_load_ushort v{vX+t}, v{vOff2}, s[{SA}:{SA+3}], 0 offen offset:{8*t}')
    if not F1LATE: f1_issue()
    a('s_or_b32 s70, s70, 1')
    a(f's_lshl_b32 s7, s{S_HP}, 3')
    a('s_add_u32 s7, s7, 64')
    a(f'v_mov_b32 v{t3}, s7')
    a(f'v_mov_b32 v{vNon+4}, s70')
    a(f'v_mov_b32 v{vNon+5}, s71')
    a(f'v_mov_b32 v{vNon+6}, 0')
    a(f'v_mov_b32 v{vNon+7}, 0')
    a('s_mov_b64 exec, 1')
    a(f'global_atomic_cmpswap_x2 {vr(vNon,2)}, v{t3}, {vr(vNon+4,4)}, s[30:31] sc0')
    a('s_mov_b64 exec, -1')
    make_selectors(V_LANE, selLo, selHi, t0, t1)
    a(f's_waitcnt vmcnt({1 if F1LATE else 14})')
    stamp(3, 4)
    for t in range(9):
        aop(vA+4*(t%2), vX+t, selLo)
        a('s_nop 1')
        for cb in range(2):
            c = '0' if t == 0 else vr(accQ+4*cb,4)
            a(f'v_mfma_f32_16x16x32_bf16 {vr(accQ+4*cb,4)}, {vr(vA+4*(t%2),4)}, {vr(vWq+8*t+4*cb,4)}, {c}')
    a(f'v_and_b32 v{t1}, 1, v{V_G}')
    a(f'v_lshlrev_b32 v{t0}, 5, v{V_C}')
    a(f'v_lshl_add_u32 v{t0}, v{t1}, 4, v{t0}')
    a(f'v_lshrrev_b32 v{t1}, 1, v{V_G}')
    a(f'v_lshl_add_u32 v{t1}, v{t1}, 10, v{t0}')
    a(f's_lshl_b32 s3, s{S_HP}, 4')
    a('s_add_u32 s3, s3, s6')
    a('s_lshl_b32 s3, s3, 11')
    a(f's_add_u32 s3, s3, {WS_QP}')
    a('s_nop 4')
    a(f'buffer_store_dwordx4 {vr(accQ,4)}, v{t1}, s[{SD}:{SD+3}], s3 offen sc1')
    a(f'buffer_store_dwordx4 {vr(accQ+4,4)}, v{t1}, s[{SD}:{SD+3}], s3 offen offset:512 sc1')
    a('s_waitcnt vmcnt(0)')
    stamp(14, 4)
    a(f'v_readfirstlane_b32 s4, v{vNon}')
    a(f'v_readfirstlane_b32 s5, v{vNon+1}')
    a('s_or_b32 s3, s4, s5')
    a('s_cmp_eq_u32 s3, 0')
    a('s_cselect_b32 s70, s70, s4')
    a('s_cselect_b32 s71, s71, s5')
    a(f'v_mov_b32 v{vNon}, s70')
    a(f'v_mov_b32 v{vNon+1}, s71')
    a(f's_lshl_b32 s3, s{S_HP}, 11')
    a(f's_add_u32 s3, s3, {WS_FLAG}')
    a('s_lshl_b32 s4, s6, 3')
    a(f'v_lshlrev_b32 v{t2}, 7, v{V_LANE}')
    a(f'v_add_u32 v{t2}, s4, v{t2}')
    a('s_mov_b64 exec, 0xffff')
    a(f'buffer_store_dwordx2 {vr(vNon,2)}, v{t2}, s[{SD}:{SD+3}], s3 offen sc1')
    a(f's_lshl_b32 s3, s{S_HKV}, 11')
    a(f's_add_u32 s3, s3, {WS_FLAG}')
    a(f's_lshl_b32 s4, s{S_CI}, 7')
    a('s_add_u32 s3, s3, s4')
    a(f'v_lshlrev_b32 v{t2}, 3, v{V_LANE}')
    a(f's_lshl_b32 s4, s{S_HKV}, 3')
    a('s_add_u32 s4, s4, 64')
    a(f'v_mov_b32 v{t3}, s4')
    a.label('L_qpoll')
    a(f'global_load_dwordx2 {vr(vNon,2)}, v{t3}, s[30:31] sc1')
    a(f'buffer_load_dwordx2 {vr(vA,2)}, v{t2}, s[{SD}:{SD+3}], s3 offen sc1')
    a('s_waitcnt vmcnt(0)')
    a(f'v_or_b32 v{t4}, v{vNon}, v{vNon+1}')
    a(f'v_cmp_ne_u64 vcc, {vr(vA,2)}, {vr(vNon,2)}')
    a(f'v_cmp_eq_u32 s[4:5], 0, v{t4}')
    a('s_nop 1')
    a('s_or_b64 s[4:5], vcc, s[4:5]')
    a('s_cmp_eq_u64 s[4:5], 0')
    a('s_cbranch_scc1 L_qgo')
    a(f's_sleep {QSLEEP}')
    a('s_branch L_qpoll')
    a.label('L_qgo')
    a('s_mov_b64 exec, -1')
    stamp(15, 4)
    a(f's_lshl_b32 s3, s{S_HKV}, 15')
    a(f's_lshl_b32 s4, s{S_B}, 10')
    a('s_add_u32 s3, s3, s4')
    a(f's_add_u32 s3, s3, {WS_QP}')
    a(f'v_lshlrev_b32 v{t1}, 4, v{V_LANE}')
    for pi in range(16):
        a(f'buffer_load_dwordx4 {vr(vWq+4*pi,4)}, v{t1}, s[{SD}:{SD+3}], s3 offen sc1')
        a('s_add_u32 s3, s3, 2048')
    a('s_waitcnt vmcnt(0)')
    for st in (8, 4, 2, 1):
        for i in range(st):
            for r in range(4):
                a(f'v_add_f32 v{vWq+4*i+r}, v{vWq+4*i+r}, v{vWq+4*(i+st)+r}')
    a(f'v_cvt_pk_bf16_f32 v{vA}, v{vWq}, v{vWq+1}')
    a(f'v_cvt_pk_bf16_f32 v{vA+1}, v{vWq+2}, v{vWq+3}')
    a(f'v_lshlrev_b32 v{t1}, 3, v{V_LANE}')
    a(f'v_add_u32 v{t1}, {L_QB}, v{t1}')
    a(f'ds_write_b64 v{t1}, {vr(vA,2)}')
    a('s_branch L_hq_join')
    a.label('L_hq_other')
    if not F1LATE: f1_issue()
    make_selectors(V_LANE, selLo, selHi, t0, t1)
    a(f'v_and_b32 v{t1}, 1, v{V_G}')
    a(f'v_lshlrev_b32 v{t0}, 5, v{V_C}')
    a(f'v_lshl_add_u32 v{t0}, v{t1}, 4, v{t0}')
    a.label('L_hq_join')
    a('s_waitcnt lgkmcnt(0)')
    stamp(4, 4)
    stamp_start(13, 4)
    a('s_barrier')
    if F1LATE: f1_issue()
else:
    raise SystemExit('non-COOP path removed; use gen_v2.py')

vT = va(1)
a(f's_lshl_b32 s3, s{S_W}, 6')
a(f'v_add_u32 v{vT}, s3, v{V_LANE}')
srd(SD, 32, None, 4 << 20)
S_REC = 61; S_YREC = 62
a(f's_lshl_b32 s3, s{S_B}, 4')
a(f's_add_u32 s3, s3, s{S_HKV}')
a('s_lshl_b32 s3, s3, 3')
a(f's_add_u32 s3, s3, s{S_SP}')
a(f's_lshl_b32 s{S_REC}, s3, 11')
a(f's_lshl_b32 s3, s{S_B}, 3')
a(f's_add_u32 s3, s3, s{S_SP}')
a('s_lshl_b32 s3, s3, 4')
a(f's_add_u32 s3, s3, s{S_HKV}')
a('s_lshl_b32 s3, s3, 10')
a(f's_add_u32 s{S_YREC}, s3, {WS_YP}')
a(f'v_mov_b32 v{t1}, -1')
a(f'v_lshlrev_b32 v{t2}, 2, v{vT}')
a(f'buffer_store_dword v{t1}, v{t2}, s[{SD}:{SD+3}], s{S_REC} offen sc1')
a(f'buffer_store_dword v{t1}, v{t2}, s[{SD}:{SD+3}], s{S_YREC} offen sc1')
a(f'v_cmp_gt_u32 vcc, 4, v{vT}')
a('s_and_saveexec_b64 s[4:5], vcc')
a('s_cbranch_execz L_i1')
a(f'buffer_store_dword v{t1}, v{t2}, s[{SD}:{SD+3}], s{S_REC} offen offset:1024 sc1')
a.label('L_i1')
a('s_mov_b64 exec, s[4:5]')
if DYN:
    S_GC = 65
    a(f's_lshr_b32 s{S_GC}, s{S_REC}, 14')
    a(f's_lshl_b32 s{S_GC}, s{S_GC}, 8')
    a(f's_add_u32 s{S_GC}, s{S_GC}, {WS_CNT}')
    a(f's_or_b32 s3, s{S_SP}, s{S_W}')
    a('s_cmp_lg_u32 s3, 0')
    a('s_cbranch_scc1 L_i2')
    a(f'v_mov_b32 v{t1}, 0')
    a('s_mov_b64 s[4:5], exec')
    a('s_mov_b64 exec, 1')
    a(f'buffer_store_dword v{t1}, v{t1}, s[{SD}:{SD+3}], s{S_GC} offen sc1')
    a('s_mov_b64 exec, s[4:5]')
    a.label('L_i2')

def softbar(idx):
    l = a.newlab('L_sb')
    a('s_waitcnt lgkmcnt(0)')
    a(f'v_mov_b32 v{t4}, {L_CNT + 4*idx}')
    a(f'v_mov_b32 v{t5}, 1')
    a('s_mov_b64 s[4:5], exec')
    a('s_mov_b64 exec, 1')
    a(f'ds_add_u32 v{t4}, v{t5}')
    a('s_mov_b64 exec, s[4:5]')
    a.label(l)
    a(f'ds_read_b32 v{t5}, v{t4}')
    a('s_waitcnt lgkmcnt(0)')
    a(f'v_readfirstlane_b32 s4, v{t5}')
    a('s_cmp_lt_u32 s4, 4')
    a(f's_cbranch_scc1 {l}')

a(f's_cmp_ge_u32 s2, {NF1}')
a('s_cbranch_scc1 L_nof1')
a('s_waitcnt vmcnt(2)')
for t in range(6):
    aop(vA+4*(t%2), vXF+t//2, selLo if t % 2 == 0 else selHi)
    a('s_nop 1')
    for mt in range(2):
        c = '0' if t == 0 else vr(accQ+4*mt,4)
        a(f'v_mfma_f32_16x16x32_bf16 {vr(accQ+4*mt,4)}, {vr(vA+4*(t%2),4)}, {vr(vF+8*t+4*mt,4)}, {c}')
a(f'v_lshrrev_b32 v{t1}, 1, v{V_G}')
a(f'v_lshl_add_u32 v{t1}, v{t1}, 9, v{t0}')
a(f's_lshl_b32 s3, s{S_W}, 11')
a(f's_add_u32 s3, s3, {L_F1R}')
a(f'v_add_u32 v{t1}, s3, v{t1}')
a('s_nop 7')
a(f'ds_write_b128 v{t1}, {vr(accQ,4)}')
a(f'ds_write_b128 v{t1}, {vr(accQ+4,4)} offset:1024')
softbar(0)
a(f'v_lshlrev_b32 v{t1}, 3, v{vT}')
a(f'v_add_u32 v{t1}, {L_F1R}, v{t1}')
for wv in range(4):
    a(f'ds_read_b64 {vr(vX+2*wv,2)}, v{t1} offset:{wv*2048}')
a('s_waitcnt lgkmcnt(0)')
for r in range(2):
    a(f'v_add_f32 v{vX+r}, v{vX+r}, v{vX+2+r}')
    a(f'v_add_f32 v{vX+4+r}, v{vX+4+r}, v{vX+6+r}')
for r in range(2):
    a(f'v_add_f32 v{vX+r}, v{vX+r}, v{vX+4+r}')
a(f's_lshl_b32 s3, s{S_KS}, 2')
a(f's_add_u32 s3, s3, s{S_W}')
a(f's_mul_i32 s3, s3, {4608*4}')
a(f's_lshl_b32 s4, s{S_CB}, 9')
a('s_add_u32 s3, s3, s4')
a(f's_add_u32 s3, s3, {WS_FP}')
a(f'v_lshlrev_b32 v{t1}, 3, v{V_LANE}')
a(f'buffer_store_dwordx2 {vr(vX,2)}, v{t1}, s[{SD}:{SD+3}], s3 offen sc1')
a.label('L_nof1')
a('s_waitcnt vmcnt(0)')
softbar(1)
a(f's_cmp_lg_u32 s{S_W}, 0')
a('s_cbranch_scc1 L_nosig')
a(f'v_mov_b32 v{t1}, 0')
a(f'v_mov_b32 v{t2}, 1')
a('s_mov_b64 s[4:5], exec')
a('s_mov_b64 exec, 1')
a(f'global_atomic_add v{t1}, v{t2}, s[30:31]')
a('s_mov_b64 exec, s[4:5]')
a.label('L_nosig')

stamp(5, 4)
vWD = vW; vWO = vW + 72; vP = vW + 72 + 64
assert vP + 40 <= vW + 176
accA = accQ; accF = accQ + 4
a(f's_cmp_eq_u32 s{S_SP}, 7')
a('s_cselect_b32 s6, 16, 8')
a(f'v_cmp_gt_u32 vcc, s6, v{V_C}')
a(f'v_lshlrev_b32 v{t1}, 4, v{V_C}')
a(f'v_mov_b32 v{t2}, 0x40000000')
a('s_nop 0')
a(f'v_cndmask_b32 v{t3}, v{t2}, v{t1}, vcc')
a(f's_mul_i32 s3, s{S_W}, {72*1152}')
a(f'v_mul_u32_u24 v{t1}, {18*1152}, v{V_G}')
a(f'v_add3_u32 v{vOff}, v{t1}, v{t3}, s3')
a(f's_mul_i32 s3, s{S_W}, {64*1152}')
a(f'v_mul_u32_u24 v{t1}, {16*1152}, v{V_G}')
a(f'v_add3_u32 v{vOff2}, v{t1}, v{t3}, s3')
a(f's_mul_i32 s3, s{S_HKV}, {288*1152}')
a(f's_lshl_b32 s4, s{S_SP}, 7')
a('s_add_u32 s3, s3, s4')
a(f's_sub_u32 s5, {4608*1152}, s3')
srd(SA, 24, 's3', 's5')
if NOPF: a(f's_mov_b32 s{SA+2}, 0')
a(f's_mul_i32 s3, s{S_HKV}, {256*1152}')
a('s_add_u32 s3, s3, s4')
a(f's_sub_u32 s5, {4096*1152}, s3')
srd(SB_, 16, 's3', 's5')
if NOPF: a(f's_mov_b32 s{SB_+2}, 0')
a(f's_mov_b32 s{S_O}, 0')
for t in range(18):
    if HD: a(f's_waitcnt vmcnt({HD-1})')
    a(f'buffer_load_dwordx4 {vr(vWD+4*t,4)}, v{vOff}, s[{SA}:{SA+3}], s{S_O} offen' + (' nt' if PFNT else ''))
    if t < 16:
        if HD: a(f's_waitcnt vmcnt({HD-1})')
        a(f'buffer_load_dwordx4 {vr(vWO+4*t,4)}, v{vOff2}, s[{SB_}:{SB_+3}], s{S_O} offen' + (' nt' if PFNT else ''))
    a(f's_add_u32 s{S_O}, s{S_O}, 1152')
a(f's_or_b32 s3, s{S_HKV}, s{S_W}')
a('s_cmp_lg_u32 s3, 0')
a('s_cbranch_scc1 L_nog')
a(f'v_cmp_gt_u32 vcc, 36, v{V_LANE}')
a(f'v_lshlrev_b32 v{t1}, 4, v{V_LANE}')
a(f'v_mov_b32 v{t2}, 0x40000000')
a('s_nop 0')
a(f'v_cndmask_b32 v{t1}, v{t2}, v{t1}, vcc')
a(f's_mul_i32 s3, s{S_B}, 1152')
srd(SC_, 8, 's3', 1152)
a(f'buffer_load_dwordx4 {vr(vP,4)}, v{t1}, s[{SC_}:{SC_+3}], 0 offen')
a(f'buffer_load_dwordx4 {vr(vP+4,4)}, v{t1}, s[{SC_}:{SC_+3}], 0 offen offset:576')
srd(SC_, 26, None, 1152)
a(f'buffer_load_dwordx4 {vr(vP+8,4)}, v{t1}, s[{SC_}:{SC_+3}], 0 offen')
a(f'buffer_load_dwordx4 {vr(vP+12,4)}, v{t1}, s[{SC_}:{SC_+3}], 0 offen offset:576')
a('s_waitcnt vmcnt(0)')
a(f'v_mov_b32 v{t4}, 0')
for i in range(8):
    a(f'v_lshlrev_b32 v{t1}, 16, v{vP+i}')
    a(f'v_lshlrev_b32 v{t2}, 16, v{vP+8+i}')
    a(f'v_and_b32 v{t3}, 0xffff0000, v{vP+i}')
    a(f'v_and_b32 v{t5}, 0xffff0000, v{vP+8+i}')
    a(f'v_mul_f32 v{t1}, v{t1}, v{t2}')
    a(f'v_mul_f32 v{t3}, v{t3}, v{t5}')
    a(f'v_cvt_pk_bf16_f32 v{t1}, v{t1}, v{t3}')
    a(f'v_lshlrev_b32 v{t2}, 16, v{t1}')
    a(f'v_and_b32 v{t3}, 0xffff0000, v{t1}')
    a(f'v_add_f32 v{t4}, v{t4}, v{t2}')
    a(f'v_add_f32 v{t4}, v{t4}, v{t3}')
def xreduce(v, tmp, op):
    for ror in (8, 4, 2, 1):
        a('s_nop 1')
        a(f'v_mov_b32_dpp v{tmp}, v{v} row_ror:{ror} row_mask:0xf bank_mask:0xf')
        a(f'{op} v{v}, v{v}, v{tmp}')
    for sw in ('v_permlane16_swap_b32', 'v_permlane32_swap_b32'):
        a(f'v_mov_b32 v{tmp}, v{v}')
        a('s_nop 1')
        a(f'{sw} v{v}, v{tmp}')
        a('s_nop 1')
        a(f'{op} v{v}, v{v}, v{tmp}')
xreduce(t4, t1, 'v_add_f32')
a(f'v_cvt_pk_bf16_f32 v{t1}, v{t4}, v{t4}')
a(f'v_lshlrev_b32 v{t1}, 16, v{t1}')
a(f'v_mul_f32 v{t1}, {f32(-LOG2E):#x}, v{t1}')
a(f'v_exp_f32 v{t1}, v{t1}')
a('s_nop 0')
a(f'v_add_f32 v{t1}, 1.0, v{t1}')
a(f'v_rcp_f32 v{t1}, v{t1}')
a('s_nop 0')
a(f'v_cvt_pk_bf16_f32 v{t1}, v{t1}, v{t1}')
a(f'v_lshlrev_b32 v{t1}, 16, v{t1}')
a(f'v_sub_f32 v{t2}, 1.0, v{t1}')
a(f'v_cvt_pk_bf16_f32 v{t2}, v{t2}, v{t2}')
a(f'v_lshlrev_b32 v{t2}, 16, v{t2}')
a('s_nop 0')
a(f'v_readfirstlane_b32 s{S_G}, v{t1}')
a(f'v_readfirstlane_b32 s{S_OMG}, v{t2}')
a.label('L_nog')

a(f's_lshl_b32 s6, s{S_W}, 2')
a(f's_add_u32 s6, s6, {L_CNT+16}')
a(f'v_mov_b32 v{t3}, s6')
a.label('L_pwait')
a(f'ds_read_b32 v{t4}, v{t3}')
a('s_waitcnt lgkmcnt(0)')
a(f'v_readfirstlane_b32 s3, v{t4}')
a('s_cmp_eq_u32 s3, 1')
a('s_cbranch_scc1 L_cwait')
a('s_sleep 16')
a('s_branch L_pwait')
a.label('L_cwait')
a(f'v_mov_b32 v{t1}, 0')
a(f'global_load_dword v{t2}, v{t1}, s[30:31] sc1')
a('s_waitcnt vmcnt(0)')
a(f'v_readfirstlane_b32 s3, v{t2}')
a('s_cmp_ge_u32 s3, 256')
a('s_cbranch_scc1 L_cdone')
a(f's_sleep {PSLEEP}')
a('s_branch L_cwait')
a.label('L_cdone')
a(f'v_mov_b32 v{t4}, 1')
a(f'ds_write_b32 v{t3}, v{t4} offset:16')

stamp(6, 4)
a(f'v_cmp_gt_u32 vcc, 36, v{V_LANE}')
a(f'v_lshlrev_b32 v{t1}, 3, v{V_LANE}')
a(f'v_mov_b32 v{t2}, 0x40000000')
a('s_nop 0')
a(f'v_cndmask_b32 v{t1}, v{t2}, v{t1}, vcc')
a(f's_mul_i32 s3, s{S_HKV}, {288*4}')
a(f's_mul_i32 s4, s{S_W}, {72*4}')
a('s_add_u32 s3, s3, s4')
a(f's_mul_i32 s4, s{S_B}, {4608*4}')
a('s_add_u32 s3, s3, s4')
a(f's_add_u32 s3, s3, {WS_FP}')
for ks in range(6):
    for mt in range(2):
        a(f'buffer_load_dwordx2 {vr(vP+2*(ks*2+mt),2)}, v{t1}, s[{SD}:{SD+3}], s3 offen sc1')
        a(f's_add_u32 s3, s3, {2*4608*4}')
a('s_waitcnt vmcnt(0)')
for mt in range(2):
    for r in range(2):
        for ks in range(1, 6):
            a(f'v_add_f32 v{vP+2*mt+r}, v{vP+2*mt+r}, v{vP+2*(ks*2+mt)+r}')
a(f'v_cvt_pk_bf16_f32 v{t1}, v{vP}, v{vP+1}')
a(f'v_cvt_pk_bf16_f32 v{t2}, v{vP+2}, v{vP+3}')
a(f'v_lshlrev_b32 v{vP}, 16, v{t1}')
a(f'v_and_b32 v{vP+1}, 0xffff0000, v{t1}')
a(f'v_lshlrev_b32 v{vP+2}, 16, v{t2}')
a(f'v_and_b32 v{vP+3}, 0xffff0000, v{t2}')
K0 = 0.7978845608028654; K1 = 0.044715
a(f's_mov_b32 s3, {f32(K1):#x}')
a(f's_mov_b32 s4, {f32(-2*LOG2E*K0):#x}')
for r in range(2):
    a(f'v_mul_f32 v{t1}, v{vP+r}, v{vP+r}')
    a(f'v_fma_f32 v{t1}, v{t1}, s3, 1.0')
    a(f'v_mul_f32 v{t1}, v{t1}, v{vP+r}')
    a(f'v_mul_f32 v{t1}, s4, v{t1}')
    a(f'v_exp_f32 v{t1}, v{t1}')
    a('s_nop 0')
    a(f'v_add_f32 v{t1}, 1.0, v{t1}')
    a(f'v_rcp_f32 v{t1}, v{t1}')
    a('s_nop 0')
    a(f'v_mul_f32 v{vP+r}, v{vP+r}, v{t1}')
a(f'v_cvt_pk_bf16_f32 v{t1}, v{vP}, v{vP+1}')
a(f'v_lshlrev_b32 v{vP}, 16, v{t1}')
a(f'v_and_b32 v{vP+1}, 0xffff0000, v{t1}')
a(f'v_mul_f32 v{vP}, v{vP}, v{vP+2}')
a(f'v_mul_f32 v{vP+1}, v{vP+1}, v{vP+3}')
a(f'v_cvt_pk_bf16_f32 v{t1}, v{vP}, v{vP+1}')
a(f's_mul_i32 s3, s{S_W}, 144')
a(f's_add_u32 s3, s3, {L_HB}')
a(f'v_lshl_add_u32 v{t2}, v{V_LANE}, 2, s3')
a(f'v_cmp_gt_u32 vcc, 36, v{V_LANE}')
a('s_and_saveexec_b64 s[4:5], vcc')
a(f'ds_write_b32 v{t2}, v{t1}')
a('s_mov_b64 exec, s[4:5]')
a(f'v_mul_u32_u24 v{t2}, 36, v{V_G}')
a(f'v_add_u32 v{t2}, s3, v{t2}')
a('s_waitcnt lgkmcnt(0)')
for i in range(9):
    a(f'ds_read_b32 v{vX+i}, v{t2} offset:{4*i}')
a('s_waitcnt lgkmcnt(0)')
for t in range(18):
    aop(vA+4*(t%2), vX+t//2, selLo if t % 2 == 0 else selHi)
    a('s_nop 1')
    c = '0' if t == 0 else vr(accF,4)
    a(f'v_mfma_f32_16x16x32_bf16 {vr(accF,4)}, {vr(vA+4*(t%2),4)}, {vr(vWD+4*t,4)}, {c}')

a.label('L_claimstart')
stamp(7, 4)
a('s_barrier')
stamp(8, 4)
if NOHELP: a('s_endpgm')
S_CC = 60
a(f's_mov_b32 s{S_CC}, {f32(LOG2E if MIMIC else SCALE*LOG2E):#x}')
a(f'v_lshlrev_b32 v{t1}, 2, v{vT}')
a(f'v_add_u32 v{t2}, {L_OW}, v{t1}')
for wv in range(4):
    a(f'ds_read_b32 v{vP+wv}, v{t2} offset:{wv*1024}')
a(f's_lshr_b32 s3, s{S_W}, 1')
a(f's_lshl_b32 s4, s3, 3')
a(f's_add_u32 s4, s4, {L_ML}')
a(f'v_mov_b32 v{t2}, s4')
for wv in range(4):
    a(f'ds_read_b64 {vr(vP+4+2*wv,2)}, v{t2} offset:{wv*16}')
a('s_waitcnt lgkmcnt(0)')
def combine(n, o, ml, outO, outM, outL, scr):
    a(f'v_max_f32 v{outM}, v{ml}, v{ml+2}')
    for i in range(2, n):
        a(f'v_max_f32 v{outM}, v{outM}, v{ml+2*i}')
    for i in range(n):
        a(f'v_sub_f32 v{ml+2*i}, v{ml+2*i}, v{outM}')
        a(f'v_mul_f32 v{ml+2*i}, s{S_CC}, v{ml+2*i}')
        a(f'v_exp_f32 v{ml+2*i}, v{ml+2*i}')
    a('s_nop 0')
    a(f'v_mul_f32 v{outO}, v{o}, v{ml}')
    a(f'v_mul_f32 v{outL}, v{ml+1}, v{ml}')
    for i in range(1, n):
        a(f'v_fmac_f32 v{outO}, v{o+i}, v{ml+2*i}')
        a(f'v_fmac_f32 v{outL}, v{ml+2*i+1}, v{ml+2*i}')
combine(4, vP, vP+4, t3, vX, vX+1, None)
a(f'buffer_store_dword v{t3}, v{t1}, s[{SD}:{SD+3}], s{S_REC} offen sc1')
a(f's_and_b32 s4, s{S_W}, 1')
a('s_cmp_lg_u32 s4, 0')
a('s_cbranch_scc1 L_noml')
a(f's_lshl_b32 s4, s3, 3')
a(f'v_mov_b32 v{t2}, s4')
a('s_mov_b64 s[4:5], exec')
a('s_mov_b64 exec, 1')
a(f'buffer_store_dwordx2 {vr(vX,2)}, v{t2}, s[{SD}:{SD+3}], s{S_REC} offen offset:1024 sc1')
a('s_mov_b64 exec, s[4:5]')
a.label('L_noml')
a(f's_andn2_b32 s4, s{S_REC}, {(8*2048)-1}')
a(f's_lshl_b32 s5, s3, 3')
a(f'v_mov_b32 v{t2}, s5')
a.label('L_poll1')
a('s_mov_b32 s5, s4')
for sp in range(8):
    a(f'buffer_load_dword v{vP+sp}, v{t1}, s[{SD}:{SD+3}], s5 offen sc1')
    a(f'buffer_load_dwordx2 {vr(vP+8+2*sp,2)}, v{t2}, s[{SD}:{SD+3}], s5 offen offset:1024 sc1')
    a('s_add_u32 s5, s5, 2048')
a('s_waitcnt vmcnt(0)')
a(f'v_max3_u32 v{t3}, v{vP}, v{vP+1}, v{vP+2}')
for i in range(3, 23, 2):
    a(f'v_max3_u32 v{t3}, v{t3}, v{vP+i}, v{vP+i+1}')
a(f'v_max_u32 v{t3}, v{t3}, v{vP+23}')
a(f'v_cmp_eq_u32 vcc, -1, v{t3}')
a('s_cbranch_vccnz L_poll1')
stamp(9, 4)
combine(8, vP, vP+8, t3, vX, vX+1, None)
a(f'v_rcp_f32 v{t4}, v{vX+1}')
a('s_nop 0')
a(f'v_mul_f32 v{t3}, v{t3}, v{t4}')
a(f'v_cvt_pk_bf16_f32 v{t3}, v{t3}, v{t3}')
a('s_nop 1')
for t in range(16):
    a('s_nop 0')
    a(f'v_mov_b32_dpp v{vX+2+(t%2)}, v{t3} row_newbcast:{t} row_mask:0xf bank_mask:0xf')
    aop(vA+4*(t%2), vX+2+(t%2), selLo)
    a('s_nop 1')
    c = '0' if t == 0 else vr(accA,4)
    a(f'v_mfma_f32_16x16x32_bf16 {vr(accA,4)}, {vr(vA+4*(t%2),4)}, {vr(vWO+4*t,4)}, {c}')
a(f's_lshl_b32 s3, s{S_W}, 10')
a(f's_add_u32 s3, s3, {L_YW}')
a(f'v_add_u32 v{t2}, s3, v{t0}')
a('s_nop 7')
a(f'ds_write_b128 v{t2}, {vr(accA,4)}')
a(f'ds_write_b128 v{t2}, {vr(accF,4)} offset:512')
a('s_waitcnt lgkmcnt(0)')
a('s_barrier')
a(f'v_lshlrev_b32 v{t1}, 2, v{vT}')
a(f'v_add_u32 v{t2}, {L_YW}, v{t1}')
for wv in range(4):
    a(f'ds_read_b32 v{vP+wv}, v{t2} offset:{wv*1024}')
a('s_waitcnt lgkmcnt(0)')
a(f'v_add_f32 v{vP}, v{vP}, v{vP+1}')
a(f'v_add_f32 v{vP+2}, v{vP+2}, v{vP+3}')
a(f'v_add_f32 v{vP}, v{vP}, v{vP+2}')
a(f'buffer_store_dword v{vP}, v{t1}, s[{SD}:{SD+3}], s{S_YREC} offen sc1')
stamp(10, 4)
a(f's_or_b32 s3, s{S_HKV}, s{S_W}')
a('s_cmp_lg_u32 s3, 0')
a('s_cbranch_scc1 L_end')
a(f's_cmp_eq_u32 s{S_SP}, 7')
a('s_cselect_b32 s6, 64, 32')
a(f'v_cmp_gt_u32 vcc, s6, v{V_LANE}')
a('s_and_saveexec_b64 s[6:7], vcc')
a(f'v_lshlrev_b32 v{t1}, 3, v{V_LANE}')
vR2 = vW
a.label('L_poll2')
a(f's_mov_b32 s5, s{S_YREC}')
for k in range(16):
    a(f'buffer_load_dwordx2 {vr(vR2+4*k,2)}, v{t1}, s[{SD}:{SD+3}], s5 offen sc1')
    a(f'buffer_load_dwordx2 {vr(vR2+4*k+2,2)}, v{t1}, s[{SD}:{SD+3}], s5 offen offset:512 sc1')
    a('s_add_u32 s5, s5, 1024')
a('s_waitcnt vmcnt(0)')
a(f'v_max3_u32 v{t3}, v{vR2}, v{vR2+1}, v{vR2+2}')
for i in range(3, 63, 2):
    a(f'v_max3_u32 v{t3}, v{t3}, v{vR2+i}, v{vR2+i+1}')
a(f'v_max_u32 v{t3}, v{t3}, v{vR2+63}')
a(f'v_cmp_eq_u32 vcc, -1, v{t3}')
a('s_cbranch_vccnz L_poll2')
stamp(11, 4)
for k in range(1, 16):
    for r in range(4):
        a(f'v_add_f32 v{vR2+r}, v{vR2+r}, v{vR2+4*k+r}')
a(f'v_cvt_pk_bf16_f32 v{t2}, v{vR2}, v{vR2+1}')
a(f'v_cvt_pk_bf16_f32 v{t3}, v{vR2+2}, v{vR2+3}')
a(f'v_lshlrev_b32 v{vR2}, 16, v{t2}')
a(f'v_and_b32 v{vR2+1}, 0xffff0000, v{t2}')
a(f'v_lshlrev_b32 v{vR2+2}, 16, v{t3}')
a(f'v_and_b32 v{vR2+3}, 0xffff0000, v{t3}')
a(f'v_mul_f32 v{vR2}, s{S_G}, v{vR2}')
a(f'v_mul_f32 v{vR2+1}, s{S_G}, v{vR2+1}')
a(f'v_mul_f32 v{vR2+2}, s{S_OMG}, v{vR2+2}')
a(f'v_mul_f32 v{vR2+3}, s{S_OMG}, v{vR2+3}')
a(f'v_cvt_pk_bf16_f32 v{t2}, v{vR2}, v{vR2+1}')
a(f'v_cvt_pk_bf16_f32 v{t3}, v{vR2+2}, v{vR2+3}')
a(f'v_lshlrev_b32 v{vR2}, 16, v{t2}')
a(f'v_and_b32 v{vR2+1}, 0xffff0000, v{t2}')
a(f'v_lshlrev_b32 v{vR2+2}, 16, v{t3}')
a(f'v_and_b32 v{vR2+3}, 0xffff0000, v{t3}')
a(f'v_add_f32 v{vR2}, v{vR2}, v{vR2+2}')
a(f'v_add_f32 v{vR2+1}, v{vR2+1}, v{vR2+3}')
a(f'v_cvt_pk_bf16_f32 v{t2}, v{vR2}, v{vR2+1}')
a(f's_mul_i32 s3, s{S_B}, 1152')
a(f's_lshl_b32 s4, s{S_SP}, 7')
a('s_add_u32 s3, s3, s4')
srd(SA, 28, None, 2304)
a(f'v_lshlrev_b32 v{t1}, 2, v{V_LANE}')
a(f'buffer_store_dword v{t2}, v{t1}, s[{SA}:{SA+3}], s3 offen')
if DBGT:
    a('s_memrealtime s[66:67]')
    a('s_waitcnt lgkmcnt(0)')
    a('s_sub_u32 s66, s66, s72')
    a(f's_lshl_b32 s3, s{S_B}, 3')
    a(f's_add_u32 s3, s3, s{S_SP}')
    a('s_and_b32 s3, s3, 3')
    a('s_lshl_b32 s3, s3, 2')
    a('s_add_u32 s3, s3, 16')
    a('v_mov_b32 v254, s66')
    a('v_mov_b32 v255, s3')
    a('s_mov_b64 exec, 1')
    a('global_store_dword v255, v254, s[30:31]')
a.label('L_end')
a('s_endpgm')

nv = max(stream_v, helper_v, va.n)
assert nv <= 256, nv
tail = f'''.section .rodata,"a"
.p2align 6
.amdhsa_kernel {NAME}
  .amdhsa_next_free_vgpr 256
  .amdhsa_next_free_sgpr 80
  .amdhsa_accum_offset 256
  .amdhsa_group_segment_fixed_size 0
  .amdhsa_kernarg_size 104
  .amdhsa_user_sgpr_count 2
  .amdhsa_user_sgpr_kernarg_segment_ptr 1
  .amdhsa_system_sgpr_workgroup_id_x 1
.end_amdhsa_kernel
'''
out = sys.argv[1] if len(sys.argv) > 1 else 'gated_mix__gqa_block_cached__geglu_ffn__decode.s'
open(out, 'w').write(print_top + a.text() + tail)
print('written', out, 'lds', LDS_BYTES, file=sys.stderr)
```
